```python
import torch

def _softmax(x, axis=-1):
    return torch.softmax(x, dim=axis)
def _gelu(x):
    return torch.nn.functional.gelu(x, approximate="tanh")
def _silu(x):
    return torch.nn.functional.silu(x)
def _sigmoid(x):
    return torch.sigmoid(x)
def _layernorm(x, axis=-1, eps=1e-5):
    m = x.mean(dim=axis, keepdim=True)
    v = x.var(dim=axis, keepdim=True, unbiased=False)
    return (x - m) / torch.sqrt(v + eps)
def _scatter_add(tgt, idx, src, axis=0):
    return tgt.clone().index_add_(axis, idx, src)
def _segment_sum(src, seg, n):
    out = torch.zeros((n,) + src.shape[1:], dtype=src.dtype)
    return out.index_add_(0, seg, src)
def _pad(x, pw):
    flat = tuple(v for pair in reversed(pw) for v in pair)
    return torch.nn.functional.pad(x, flat)

kernel_name = 'sequential_preLN__sliding_block_cached__glu_gated_bilinear__decode'

def setup_inputs():

    _w = (lambda a: (lambda t: t.to(torch.bfloat16) if t.is_floating_point() else t)(torch.as_tensor(a)))
    def _A_setup():
        B, Sq, D = 2, 1, 448
        Hq, Hkv, Sk, Dh = 16, 8, 32768, 256
        assert Hq % Hkv == 0, (Hq, Hkv)
        return {
            "x": _w((lambda *s: torch.randn(*s, dtype=torch.bfloat16) * 0.05)(B, Sq, D)),
            "k_cache": _w((lambda *s: torch.randn(*s, dtype=torch.bfloat16) * 1.6)(B, Hkv, Sk, Dh)),
            "v_cache": _w((lambda *s: torch.randn(*s, dtype=torch.bfloat16) * 0.8)(B, Hkv, Sk, Dh)),
            "wq": _w((lambda *s: torch.randn(*s, dtype=torch.bfloat16) * 1.6)(D, Hq * Dh) * (D ** -0.5)),
            "wo": _w((lambda *s: torch.randn(*s, dtype=torch.bfloat16) * 0.8)(Hq * Dh, D) * ((Hq * Dh) ** -0.5)),
        }
    _A_in = _A_setup()

    def _B_setup():
        B, S, D, F = 2, 1, 448, 1792
        return {
            "x": _w((lambda *s: torch.randn(*s, dtype=torch.bfloat16) * 0.05)(B, S, D)),
            "w_gate": _w((lambda *s: torch.randn(*s, dtype=torch.bfloat16) * 0.4)(D, F) * (D ** -0.5)),
            "w_up": _w((lambda *s: torch.randn(*s, dtype=torch.bfloat16) * 0.4)(D, F) * (D ** -0.5)),
            "w_down": _w((lambda *s: torch.randn(*s, dtype=torch.bfloat16) * 0.4)(F, D) * (F ** -0.5)),
        }
    _B_in = _B_setup()

    return {
        "A_x": _A_in["x"],
        "A_k_cache": _A_in["k_cache"],
        "A_v_cache": _A_in["v_cache"],
        "A_wq": _A_in["wq"],
        "A_wo": _A_in["wo"],
        "B_x": _B_in["x"],
        "B_w_gate": _B_in["w_gate"],
        "B_w_up": _B_in["w_up"],
        "B_w_down": _B_in["w_down"],
    }

def reference(A_x, A_k_cache, A_v_cache, A_wq, A_wo, B_x, B_w_gate, B_w_up, B_w_down):
    def _A_ref(x, k_cache, v_cache, wq, wo):
        B, Sq, D = x.shape
        Hq, Dh = 16, 256
        Hkv, Sk = k_cache.shape[1], k_cache.shape[2]
        W = min(4096, max(256, Sk // 4))
        rep = Hq // Hkv
        q = (lambda x, *d: x.permute(*d))((x @ wq).reshape(B, Sq, Hq, Dh), 0, 2, 1, 3)
        k = (lambda x, n, axis: torch.repeat_interleave(x, n, dim=axis))(k_cache[:, :, Sk - W:, :], rep, axis=1)
        v = (lambda x, n, axis: torch.repeat_interleave(x, n, dim=axis))(v_cache[:, :, Sk - W:, :], rep, axis=1)
        scores = torch.einsum("bhqd,bhkd->bhqk", q, k) * (Dh ** -0.5)
        p = _softmax(scores, axis=-1)
        o = torch.einsum("bhqk,bhkd->bhqd", p, v)
        return (lambda x, *d: x.permute(*d))(o, 0, 2, 1, 3).reshape(B, Sq, Hq * Dh) @ wo

    def _B_ref(x, w_gate, w_up, w_down):
        g = torch.einsum("bsd,df->bsf", x, w_gate)
        u = torch.einsum("bsd,df->bsf", x, w_up)
        h = g * u
        return torch.einsum("bsf,fd->bsd", h, w_down)

    x = A_x
    h = x + _A_ref(_layernorm(x, axis=-1), A_k_cache, A_v_cache, A_wq, A_wo)
    h2 = h + _B_ref(_layernorm(h, axis=-1), B_w_gate, B_w_up, B_w_down)
    return h2
```

```python
import re

def regs_of(tok):
    tok = tok.strip()
    neg = tok.lstrip("-|").rstrip("|")
    m = re.fullmatch(r"([vsa])\[(\d+):(\d+)\]", neg)
    if m: return [(m.group(1), i) for i in range(int(m.group(2)), int(m.group(3)) + 1)]
    m = re.fullmatch(r"([vsa])(\d+)", neg)
    if m: return [(m.group(1), int(m.group(2)))]
    if neg == "vcc": return [("s", 106), ("s", 107)]
    if neg == "exec": return [("s", 126), ("s", 127)]
    if neg == "m0": return [("s", 124)]
    return []

TRANS = ("v_exp_", "v_log_", "v_rcp_", "v_rsq_", "v_sqrt_", "v_sin_", "v_cos_")

class Ins:
    def __init__(self, text):
        self.text = text
        t = text.split(";")[0].strip()
        self.label = t.endswith(":") or t.startswith(".") or t == ""
        self.op = t.split()[0] if t and not self.label else ""
        rest = t[len(self.op):].strip() if self.op else ""
        ops = [o.strip() for o in rest.split(",")] if rest else []
        if ops:
            last = ops[-1].split()
            mods = last[1:]; ops[-1] = last[0] if last else ""
        else: mods = []
        self.mods = " ".join(mods)
        op = self.op
        self.valu = op.startswith("v_")
        self.mfma = op.startswith("v_mfma")
        self.trans = op.startswith(TRANS)
        self.dpp = "_dpp" in op
        self.perm = op.startswith("v_permlane")
        self.rdlane = op.startswith(("v_readlane", "v_readfirstlane"))
        self.vmem = op.startswith(("buffer_", "global_"))
        self.ds = op.startswith("ds_")
        self.ldsdma = self.vmem and " lds" in (" " + self.mods)
        self.w, self.r = [], []
        R = [regs_of(o) for o in ops]
        flat = lambda l: [x for y in l for x in y]
        if self.valu:
            if self.perm: self.w = flat(R[:2]); self.r = flat(R[:2])
            elif op.startswith(("v_add_co", "v_sub_co", "v_addc_co", "v_subb_co")):
                self.w = flat(R[:2]); self.r = flat(R[2:])
            else:
                self.w = R[0] if R else []; self.r = flat(R[1:])
                if op.startswith(("v_fmac", "v_dot2c", "v_writelane")) or self.dpp: self.r += self.w
            self.srcc = R[3] if self.mfma and len(R) > 3 else []
            self.srcab = flat(R[1:3]) if self.mfma else []
        elif self.vmem:
            if "store" in op or self.ldsdma or ("atomic" in op): self.r = flat(R)
            else: self.w = R[0]; self.r = flat(R[1:])
            self.wide = "store" in op and ("x3" in op or "x4" in op)
            self.data = R[0] if "store" in op and op.startswith("buffer_") else []
        elif self.ds:
            if op.startswith(("ds_read", "ds_bpermute", "ds_permute", "ds_swizzle")) or "_rtn" in op:
                self.w = R[0]; self.r = flat(R[1:])
            else: self.r = flat(R)
        elif op.startswith("s_"):
            if op.startswith(("s_cmp", "s_cbranch", "s_branch", "s_waitcnt", "s_nop", "s_barrier", "s_sleep", "s_endpgm", "s_setprio", "s_bitcmp")):
                self.r = flat(R)
            else:
                self.w = R[0] if R else []; self.r = flat(R[1:])
        self.states = 0 if self.label else 1
        if op == "s_nop": self.states = int(ops[0], 0) + 1

def need(p, c):
    n = 0
    pw = set(p.w); cr = set(c.r); cw = set(c.w)
    vw = {x for x in pw if x[0] in "va"}; sw = {x for x in pw if x[0] == "s"}
    if p.valu and not p.mfma:
        if c.mfma and vw & cr: n = max(n, 2)
        if (c.dpp or c.perm) and vw & cr: n = max(n, 2)
        if c.rdlane and vw & cr: n = max(n, 1)
        if p.trans and c.valu and not c.trans and vw & cr: n = max(n, 1)
        if sw & cr:
            if c.vmem: n = max(n, 5)
            elif c.rdlane or c.op.startswith("v_writelane"): n = max(n, 4)
            elif c.valu: n = max(n, 2)
    if p.mfma:
        passes = 8 if "32x32" in p.op else 4
        full = {4: 8, 8: 12}[passes]
        if c.mfma:
            if vw & set(c.srcab): n = max(n, full)
            if vw & set(c.srcc) and (sorted(p.w) != sorted(c.srcc) or p.op != c.op): n = max(n, full - 2)
            if vw & cw and not (vw & set(c.srcc)): n = max(n, full)
        elif (c.valu or c.vmem or c.ds) and vw & (cr | cw): n = max(n, full)
        if c.valu and not c.mfma and set(p.srcc) & cw: n = max(n, passes - 1)
    if p.vmem and getattr(p, "wide", False) and set(p.data) & cw: n = max(n, 2)
    if p.op.startswith("s_") and ("s", 124) in pw and (c.ldsdma): n = max(n, 1)
    return n

def pad(lines):
    out = []
    for text in lines:
        for t in text.split("\n"):
            c = Ins(t)
            if not c.label:
                dist = 0; req = 0
                for p in reversed(out):
                    if dist >= 20: break
                    if not p.label:
                        req = max(req, need(p, c) - dist)
                    dist += p.states
                if req > 0:
                    out.append(Ins(f"    s_nop {req-1}"))
            out.append(c)
    return [i.text for i in out]
```

```python
import sys, struct
from asmlib import pad
NAME = "sequential_preLN__sliding_block_cached__glu_gated_bilinear__decode"

def f2u(x): return struct.unpack("<I", struct.pack("<f", x))[0]

WS_E, WS_Q, WS_ST, WS_O, WS_P, WS_F = 0x0, 0x1000, 0x10000, 0x20000, 0x60000, 0x70000
WS_STAMP = 0x100000
WS_SIZE = 0x200000
L_WQ, L_QS, L_PT, L_FL, L_RED, L_RED2 = 0x20000, 0x24000, 0x24400, 0x24C00, 0x25000, 0x27000
L_R3, L_R3S, L_HH = 0x20000, 0x21000, 0x22000
LDS_SIZE = 0x27400
F_QRDY, F_KRDY, F_PRDY, F_CNT, F_FAC, F_FRDY, F_ZERO = 0, 16, 32, 48, 64, 96, 112
SPIN_LDS, SPIN_MEM = 1 << 21, 1 << 18

def gen(window=8, stamps=False, force_sc1=False, rotmul=1):
    L = []
    def a(s): L.append("    " + s)
    def lab(s): L.append(s + ":")
    uid = [0]
    def new(p): uid[0] += 1; return f"L_{p}{uid[0]}"
    sWAVE, sX, sI, sB, sS, sWL, sH = "s3", "s4", "s5", "s6", "s7", "s8", "s9"
    sT0, sT1, sT2, sT3, sCNT, sSAME = "s10", "s11", "s12", "s13", "s14", "s15"
    K, V, WS, X, WQ, WO, WG, WU, WD, OUT = (f"s[{n}:{n+3}]" for n in range(40, 80, 4))
    def srd(n, lo, size):
        a(f"s_mov_b32 s{n}, s{lo}"); a(f"s_mov_b32 s{n+1}, s{lo+1}")
        a(f"s_mov_b32 s{n+2}, {size:#x}"); a(f"s_mov_b32 s{n+3}, 0x20000")
    def stamp(k):
        if stamps:
            a("s_memrealtime s[100:101]"); a("s_waitcnt lgkmcnt(0)"); a(f"s_mov_b32 s{84+k}, s100")
    def vr(b, n): return f"v[{b}:{b+n-1}]"
    def lds_spin(vaddr, off, dst=sT0):
        l, d = new("spin"), new("got")
        a(f"s_mov_b32 {sCNT}, 0")
        lab(l)
        a(f"ds_read_b32 v1, {vaddr} offset:{off}")
        a(f"s_add_u32 {sCNT}, {sCNT}, 1")
        a("s_waitcnt lgkmcnt(0)")
        a(f"v_readfirstlane_b32 {dst}, v1")
        a(f"s_cmp_lg_u32 {dst}, 0"); a(f"s_cbranch_scc1 {d}")
        a(f"s_cmp_gt_u32 {sCNT}, {SPIN_LDS}"); a("s_cbranch_scc1 L_exit")
        a("s_sleep 1"); a(f"s_branch {l}")
        lab(d)
    def allreduce(op, regs, tmps):
        for sh in (8, 4, 2, 1):
            for r in regs: a(f"{op}_dpp v{r}, v{r}, v{r} row_ror:{sh} row_mask:0xf bank_mask:0xf")
        for sw in ("v_permlane16_swap_b32", "v_permlane32_swap_b32"):
            for r, t in zip(regs, tmps): a(f"v_mov_b32 v{t}, v{r}")
            for r, t in zip(regs, tmps): a(f"{sw} v{r}, v{t}")
            for r, t in zip(regs, tmps): a(f"{op} v{r}, v{r}, v{t}")
    def store_local(text):
        if force_sc1:
            for t in text: a(t + " sc1")
            return
        l1, l2 = new("far"), new("st")
        a(f"s_cmp_eq_u32 {sSAME}, 2"); a(f"s_cbranch_scc0 {l1}")
        for t in text: a(t)
        a(f"s_branch {l2}")
        lab(l1)
        for t in text: a(t + " sc1")
        lab(l2)
    def maxchain(dst, regs):
        regs = list(regs)
        a(f"v_max3_u32 v{dst}, v{regs[0]}, v{regs[1]}, v{regs[2]}") if len(regs) >= 3 else a(f"v_max_u32 v{dst}, v{regs[0]}, v{regs[1]}")
        rest = regs[3:] if len(regs) >= 3 else []
        while rest:
            if len(rest) >= 2:
                a(f"v_max3_u32 v{dst}, v{dst}, v{rest[0]}, v{rest[1]}"); rest = rest[2:]
            else:
                a(f"v_max_u32 v{dst}, v{dst}, v{rest[0]}"); rest = []
    def poll(loads, regs, tmp=1):
        l, d = new("poll"), new("ok")
        a(f"s_mov_b32 {sCNT}, 0")
        lab(l)
        for t in loads: a(t + " sc1")
        a(f"s_add_u32 {sCNT}, {sCNT}, 1")
        a(f"s_cmp_gt_u32 {sCNT}, {SPIN_MEM}"); a("s_cbranch_scc1 L_exit")
        a("s_waitcnt vmcnt(0)")
        maxchain(tmp, regs)
        a(f"v_cmp_eq_u32 vcc, -1, v{tmp}")
        a("s_and_b64 exec, exec, vcc")
        a(f"s_cbranch_scc1 {l}")
        lab(d)
        a("s_mov_b64 exec, -1")

    L.append(f"; @launch grid=(256,1,1) block=(512,1,1) lds={LDS_SIZE}")
    L.append('.amdgcn_target "amdgcn-amd-amdhsa--gfx950"')
    L.append(".text"); L.append(f".globl {NAME}_kernel"); L.append(".p2align 8")
    L.append(f".type {NAME}_kernel,@function"); lab(f"{NAME}_kernel")
    a("s_cmp_ge_u32 s2, 256"); a("s_cbranch_scc1 L_end")
    a("s_load_dwordx16 s[16:31], s[0:1], 0")
    a("s_load_dwordx8 s[32:39], s[0:1], 64")
    if stamps:
        for k in range(16): a(f"s_mov_b32 s{84+k}, 0")
        a("s_memrealtime s[82:83]")
    a("v_lshrrev_b32 v1, 6, v0")
    a("v_and_b32 v0, 63, v0")
    a(f"v_readfirstlane_b32 {sWAVE}, v1")
    a("v_and_b32 v2, 31, v0"); a("v_lshlrev_b32 v3, 2, v2"); a(f"v_add_u32 v3, {L_FL:#x}, v3"); a("v_mov_b32 v4, 0")
    a("ds_write_b32 v3, v4")
    a(f"s_and_b32 {sX}, s2, 7"); a(f"s_lshr_b32 {sI}, s2, 3")
    a(f"s_lshr_b32 {sB}, {sI}, 4"); a(f"s_and_b32 {sS}, {sI}, 15")
    a(f"s_lshl_b32 {sWL}, {sX}, 5"); a(f"s_add_u32 {sWL}, {sWL}, {sI}")
    a(f"s_and_b32 {sH}, {sWAVE}, 3")
    a(f"s_lshl_b32 {sT0}, {sH}, 2"); a(f"s_add_u32 {sT0}, {sT0}, {L_FL:#x}"); a(f"v_mov_b32 v6, {sT0}")
    a(f"v_mov_b32 v7, {L_FL:#x}")
    a(f"s_cmp_ge_u32 {sWAVE}, 4"); a("s_cbranch_scc1 L_helper")

    a("v_lshrrev_b32 v1, 5, v0"); a("v_xor_b32 v2, v2, v1"); a("v_lshlrev_b32 v2, 4, v2")
    a("v_lshl_add_u32 v8, v1, 9, v2")
    for k in range(1, 8): a(f"v_xor_b32 v{8+k}, {32*k}, v8")
    a(f"s_lshl_b32 {sT0}, {sB}, 3"); a(f"s_add_u32 {sT0}, {sT0}, {sX}"); a(f"s_lshl_b32 {sT0}, {sT0}, 24")
    a(f"s_lshl_b32 {sT1}, {sS}, 17"); a(f"s_add_u32 {sT0}, {sT0}, {sT1}")
    a(f"s_lshl_b32 {sT1}, {sH}, 11"); a(f"s_add_u32 {sT0}, {sT0}, {sT1}")
    a(f"s_add_u32 s80, {sT0}, 0xE00000")
    a(f"s_mul_i32 s81, {sI}, {8192*rotmul}"); a("s_and_b32 s81, s81, 0x1ffff")
    a(f"s_lshl_b32 {sT1}, {sH}, 15"); a(f"s_mov_b32 m0, {sT1}")
    a("s_waitcnt lgkmcnt(0)")
    srd(40, 18, 0x10000000);
    a("s_barrier")
    a(f"s_mov_b32 {sT2}, 0")
    lab("L_kloop")
    for rr in range(4):
        a(f"s_add_u32 {sT0}, s80, s81")
        a(f"buffer_load_dwordx4 v{8+2*rr}, {K}, {sT0} offen nt lds")
        a(f"s_waitcnt vmcnt({window-1})")
        a(f"buffer_load_dwordx4 v{9+2*rr}, {K}, {sT0} offen offset:1024 nt lds")
        a("s_add_u32 s81, s81, 8192"); a("s_and_b32 s81, s81, 0x1ffff")
        a("s_add_u32 m0, m0, 2048")
        a(f"s_waitcnt vmcnt({window-1})")
    a(f"s_add_u32 {sT2}, {sT2}, 1"); a(f"s_cmp_lt_u32 {sT2}, 4"); a("s_cbranch_scc1 L_kloop")
    srd(44, 20, 0x10000000); srd(48, 38, WS_SIZE)
    a("v_lshrrev_b32 v1, 4, v0"); a("v_and_b32 v2, 15, v0"); a("v_lshlrev_b32 v2, 4, v2"); a("v_lshl_add_u32 v16, v1, 9, v2")
    a("v_mov_b32 v5, 1")
    stamp(0)
    n = 0
    for r in range(16):
        a(f"s_add_u32 {sT0}, s80, s81")
        for h in range(2):
            a(f"buffer_load_dwordx4 {vr(64+8*r+4*h,4)}, v16, {V}, {sT0} offen offset:{256*h} nt")
            if h == 1 and r < 15:
                a("s_add_u32 s81, s81, 8192"); a("s_and_b32 s81, s81, 0x1ffff")
            n += 1
            if n < 32: a(f"s_waitcnt vmcnt({window-1})")
            if n == window - 1:
                a(f"ds_write_b32 v6, v5 offset:{F_KRDY}")
                stamp(1)
    stamp(2)
    a("v_and_b32 v1, 1, v0"); a("v_lshlrev_b32 v1, 4, v1"); a("v_mov_b32 v2, 0xffff"); a("v_lshlrev_b32 v2, v1, v2")
    a("v_bfe_u32 v1, v0, 1, 2")
    for r in range(4):
        a(f"v_cmp_eq_u32 vcc, {r}, v1"); a(f"v_cndmask_b32 v{20+r}, 0, v2, vcc")
    a("v_bfe_u32 v1, v0, 3, 1"); a("v_lshlrev_b32 v1, 8, v1"); a("v_lshrrev_b32 v2, 4, v0"); a("v_lshl_add_u32 v1, v2, 6, v1")
    a(f"s_lshl_b32 {sT0}, {sH}, 9"); a(f"s_add_u32 {sT0}, {sT0}, {L_PT:#x}"); a(f"v_add_u32 v17, {sT0}, v1")
    a(f"s_lshl_b32 {sT0}, {sH}, 11"); a(f"s_add_u32 {sT0}, {sT0}, {L_RED:#x}")
    a("v_lshlrev_b32 v1, 4, v0"); a(f"v_add_u32 v18, {sT0}, v1"); a(f"v_add_u32 v19, {L_RED:#x}, v1")
    a("v_lshrrev_b32 v1, 5, v0"); a("v_lshlrev_b32 v1, 2, v1"); a(f"s_lshl_b32 {sT0}, {sH}, 3")
    a(f"s_add_u32 {sT0}, {sT0}, {L_FL + F_FAC:#x}"); a(f"v_add_u32 v4, {sT0}, v1")
    a("v_lshrrev_b32 v1, 5, v0"); a("v_lshlrev_b32 v1, 9, v1"); a("v_and_b32 v2, 15, v0"); a("v_lshl_add_u32 v1, v2, 4, v1")
    a("v_bfe_u32 v2, v0, 4, 1"); a("v_lshl_add_u32 v3, v2, 3, v1")
    a(f"s_lshl_b32 s80, {sWL}, 10"); a(f"s_add_u32 s80, s80, {WS_O:#x}")
    lds_spin("v6", F_PRDY)
    for j in range(4): a(f"ds_read_b128 {vr(24+4*j,4)}, v17 offset:{16*j}")
    a(f"ds_read_b32 v2, v7 offset:{F_QRDY}")
    a("s_waitcnt lgkmcnt(0)")
    a(f"v_readfirstlane_b32 {sSAME}, v2")
    stamp(3)
    def amask(r):
        for j in range(4): a(f"v_and_b32 v{40+4*(r&1)+j}, v{24+r}, v{20+j}")
    amask(0)
    for r in range(16):
        if r == 11:
            lds_spin("v6", F_FRDY)
            a("ds_read_b32 v56, v4")
        if r < 15: amask(r + 1)
        a(f"s_waitcnt vmcnt({30-2*r})")
        for h in range(2):
            c = "0" if r == 0 else vr(48+4*h, 4)
            a(f"v_mfma_f32_16x16x32_bf16 {vr(48+4*h,4)}, {vr(40+4*(r&1),4)}, {vr(64+8*r+4*h,4)}, {c}")
    a("s_waitcnt lgkmcnt(0)")
    stamp(4)
    for j in range(4): a(f"v_mul_f32 v{48+j}, v{48+j}, v56")
    a(f"ds_write_b128 v18, {vr(48,4)}")
    for j in range(4, 8): a(f"v_mul_f32 v{48+j}, v{48+j}, v56")
    a(f"ds_write_b128 v18, {vr(52,4)} offset:1024")
    a("s_mov_b64 exec, 1")
    a(f"ds_add_rtn_u32 v1, v7, v5 offset:{F_CNT}")
    a("s_mov_b64 exec, -1")
    a("s_waitcnt lgkmcnt(0)")
    a(f"v_readfirstlane_b32 {sT0}, v1")
    a(f"s_cmp_eq_u32 {sT0}, 3"); a("s_cbranch_scc0 L_exit")
    for hh in range(2):
        for w in range(4): a(f"ds_read_b128 {vr(64+16*hh+4*w,4)}, v19 offset:{2048*w+1024*hh}")
    for hh in range(2):
        b0 = 64 + 16 * hh
        a(f"s_waitcnt lgkmcnt({4-4*hh})")
        for j in (0, 2):
            a(f"v_pk_add_f32 {vr(b0+j,2)}, {vr(b0+j,2)}, {vr(b0+4+j,2)}")
            a(f"v_pk_add_f32 {vr(b0+8+j,2)}, {vr(b0+8+j,2)}, {vr(b0+12+j,2)}")
        for j in (0, 2): a(f"v_pk_add_f32 {vr(b0+j,2)}, {vr(b0+j,2)}, {vr(b0+8+j,2)}")
        a(f"v_cvt_pk_bf16_f32 v{b0}, v{b0}, v{b0+1}"); a(f"v_cvt_pk_bf16_f32 v{b0+1}, v{b0+2}, v{b0+3}")
        a(f"v_min_u32 v{b0}, -2, v{b0}"); a(f"v_min_u32 v{b0+1}, -2, v{b0+1}")
    store_local([f"buffer_store_dwordx2 {vr(64,2)}, v3, {WS}, s80 offen",
                 f"buffer_store_dwordx2 {vr(80,2)}, v3, {WS}, s80 offen offset:256"])
    stamp(5)
    a("s_branch L_exit")

    lab("L_helper")
    a("v_lshrrev_b32 v1, 1, v0"); a("v_and_b32 v2, 1, v0"); a("v_lshlrev_b32 v2, 4, v2")
    a("v_lshl_add_u32 v8, v1, 13, v2")
    a("v_mul_u32_u24 v9, 896, v1"); a("v_add_u32 v9, v9, v2")
    a("v_mul_u32_u24 v10, 3584, v1"); a("v_add_u32 v10, v10, v2")
    a("v_lshrrev_b32 v12, 4, v0"); a("v_and_b32 v13, 15, v0")
    a("v_lshlrev_b32 v1, 3, v13"); a("v_lshl_add_u32 v11, v12, 8, v1")
    a("v_mov_b32 v14, 0"); a("v_lshlrev_b32 v15, 4, v0")
    a("v_mov_b32 v5, 1")
    a(f"s_mov_b32 m0, {L_WQ:#x}")
    a(f"s_lshl_b32 {sT0}, {sWL}, 5")
    a("s_getreg_b32 s81, hwreg(HW_REG_XCC_ID, 0, 4)")
    a("s_waitcnt lgkmcnt(0)")
    srd(56, 22, 448*4096*2); srd(48, 38, WS_SIZE)
    a("s_barrier")
    a(f"s_cmp_eq_u32 {sH}, 0"); a("s_cbranch_scc1 L_q")
    a(f"buffer_load_dwordx2 v[2:3], v14, {WS}, 0 offen sc1")
    a("s_waitcnt vmcnt(0)")
    a("v_add_u32 v2, 0x7f4a7c15, v2"); a("v_add_u32 v3, 0x9e3779b0, v3"); a("v_and_b32 v3, -16, v3")
    a("s_branch L_qdone")
    lab("L_q")
    for u in range(14):
        a(f"buffer_load_dwordx4 v8, {WQ}, {sT0} offen lds")
        if u < 13:
            a(f"s_add_u32 {sT0}, {sT0}, {32*8192}"); a("s_add_u32 m0, m0, 1024")
    srd(52, 16, 2*448*2)
    a("v_cmp_eq_u32 vcc, 2, v13"); a("v_mov_b32 v1, 0x3f803f80"); a("v_cndmask_b32 v1, 0, v1, vcc")
    for r in range(56): a(f"v_mov_b32 v{64+r}, v1")
    a("v_mul_u32_u24 v1, 896, v13"); a("v_lshl_add_u32 v1, v12, 4, v1")
    a("s_mov_b32 exec_lo, 0x00030003"); a("s_mov_b32 exec_hi, 0x00030003")
    for u in range(14): a(f"buffer_load_dwordx4 {vr(64+4*u,4)}, v1, {X}, 0 offen offset:{64*u}")
    a("s_mov_b64 exec, -1")
    a(f"buffer_load_dwordx2 v[2:3], v14, {WS}, 0 offen sc1")
    for r in range(4): a(f"v_mov_b32 v{20+r}, -1")
    a(f"s_lshl_b32 {sT0}, {sWL}, 10"); a(f"s_add_u32 {sT0}, {sT0}, {WS_O:#x}")
    a(f"buffer_store_dwordx4 v[20:23], v15, {WS}, {sT0} offen sc1")
    a(f"s_cmp_ge_u32 {sI}, 25"); a("s_cbranch_scc0 L_noclrF")
    a(f"s_mul_i32 {sT0}, {sX}, 7"); a(f"s_add_u32 {sT0}, {sT0}, {sI}"); a(f"s_sub_u32 {sT0}, {sT0}, 25")
    a(f"s_mul_i32 {sT0}, {sT0}, 3584"); a(f"s_add_u32 {sT0}, {sT0}, {WS_F:#x}")
    for k in range(3): a(f"buffer_store_dwordx4 v[20:23], v15, {WS}, {sT0} offen offset:{1024*k} sc1")
    a(f"buffer_store_dwordx4 v[20:23], v15, {WS}, {sT0} offen offset:{2560} sc1")
    lab("L_noclrF")
    a("s_mov_b64 exec, 15")
    a(f"s_lshl_b32 {sT0}, {sWL}, 6"); a(f"s_add_u32 {sT0}, {sT0}, {WS_ST:#x}")
    a(f"buffer_store_dwordx4 v[20:23], v15, {WS}, {sT0} offen sc1")
    a(f"s_cmp_lt_u32 {sI}, 28"); a("s_cbranch_scc0 L_noclrP")
    a("s_mov_b64 exec, 0xff")
    a(f"s_mul_i32 {sT0}, {sX}, 28"); a(f"s_add_u32 {sT0}, {sT0}, {sI}"); a(f"s_lshl_b32 {sT0}, {sT0}, 7"); a(f"s_add_u32 {sT0}, {sT0}, {WS_P:#x}")
    a(f"buffer_store_dwordx4 v[20:23], v15, {WS}, {sT0} offen sc1")
    lab("L_noclrP")
    a("s_mov_b64 exec, -1")
    a(f"v_add_u32 v1, {L_WQ:#x}, v11")
    a("s_waitcnt vmcnt(0)")
    stamp(0)
    for u in range(14):
        a(f"ds_read_b64_tr_b16 {vr(128+4*u,2)}, v1 offset:{1024*u}")
        a(f"ds_read_b64_tr_b16 {vr(130+4*u,2)}, v1 offset:{1024*u+128}")
        a(f"v_mfma_f32_16x16x32_bf16 v[20:23], {vr(64+4*u,4)}, {vr(64+4*u,4)}, " + ("0" if u == 0 else "v[20:23]"))
        if u >= 5: a("s_waitcnt lgkmcnt(10)")
    a("v_add_u32 v2, 0x7f4a7c15, v2"); a("v_add_u32 v3, 0x9e3779b0, v3"); a("v_and_b32 v3, -16, v3")
    a("s_waitcnt lgkmcnt(0)")
    for u in range(14):
        a(f"v_mfma_f32_16x16x32_bf16 v[24:27], {vr(128+4*u,4)}, {vr(64+4*u,4)}, " + ("0" if u == 0 else "v[24:27]"))
    a(f"v_readlane_b32 {sT0}, v20, 0"); a(f"v_readlane_b32 {sT1}, v21, 1")
    a(f"v_readlane_b32 {sT2}, v22, 0"); a(f"v_readlane_b32 {sT3}, v22, 1")
    a("v_and_b32 v1, 1, v0"); a("v_cmp_eq_u32 vcc, 1, v1")
    a(f"v_mov_b32 v28, {sT0}"); a(f"v_mov_b32 v29, {sT1}"); a(f"v_mov_b32 v30, {sT2}"); a(f"v_mov_b32 v31, {sT3}")
    a("v_cndmask_b32 v28, v28, v29, vcc"); a("v_cndmask_b32 v30, v30, v31, vcc")
    a(f"v_mul_f32 v30, {f2u(1/448):#x}, v30")
    a(f"v_mul_f32 v28, {f2u(1/448):#x}, v28")
    a("v_fma_f32 v28, -v30, v30, v28"); a("v_max_f32 v28, 0, v28")
    a(f"v_add_f32 v28, {f2u(1e-5):#x}, v28"); a("v_rsq_f32 v28, v28")
    for j in range(4): a(f"v_mov_b32_dpp v{32+j}, v{24+j} quad_perm:[2,2,2,2] row_mask:0xf bank_mask:0xf")
    for j in range(4): a(f"v_fma_f32 v{24+j}, -v30, v{32+j}, v{24+j}")
    for j in range(4): a(f"v_mul_f32 v{24+j}, v{24+j}, v28")
    a("v_mov_b32 v20, v2"); a("v_or_b32 v21, s81, v3")
    a("v_cvt_pk_bf16_f32 v22, v24, v25"); a("v_cvt_pk_bf16_f32 v23, v26, v27")
    a("v_lshlrev_b32 v1, 6, v13"); a("v_lshl_add_u32 v1, v12, 4, v1")
    a(f"s_lshl_b32 {sT0}, {sWL}, 7"); a(f"s_add_u32 {sT0}, {sT0}, {WS_Q:#x}")
    a("s_mov_b32 exec_lo, 0x00030003"); a("s_mov_b32 exec_hi, 0x00030003")
    a(f"buffer_store_dwordx4 v[20:23], v1, {WS}, {sT0} offen sc1")
    a("s_mov_b64 exec, -1")
    stamp(1)
    a("v_lshrrev_b32 v1, 2, v0"); a("v_lshlrev_b32 v1, 7, v1"); a("v_and_b32 v4, 3, v0"); a("v_lshl_add_u32 v4, v4, 4, v1")
    a(f"s_lshl_b32 {sT0}, {sX}, 12"); a(f"s_lshl_b32 {sT1}, {sB}, 6"); a(f"s_add_u32 {sT0}, {sT0}, {sT1}"); a(f"s_add_u32 {sT0}, {sT0}, {WS_Q:#x}")
    a(f"s_mov_b32 {sCNT}, 0")
    lab("L_qpoll")
    a(f"buffer_load_dwordx4 v[24:27], v4, {WS}, {sT0} offen sc1")
    a(f"buffer_load_dwordx4 v[28:31], v4, {WS}, {sT0} offen offset:2048 sc1")
    a(f"s_add_u32 {sCNT}, {sCNT}, 1"); a(f"s_cmp_gt_u32 {sCNT}, {SPIN_MEM}"); a("s_cbranch_scc1 L_exit")
    a("s_waitcnt vmcnt(0)")
    a("v_xor_b32 v32, v24, v2"); a("v_xor_b32 v33, v28, v2"); a("v_xor_b32 v34, v25, v3"); a("v_xor_b32 v35, v29, v3")
    a("v_or_b32 v34, v34, v35"); a("v_and_b32 v34, -16, v34"); a("v_or3_b32 v32, v32, v33, v34")
    a("v_cmp_ne_u32 vcc, 0, v32")
    a("s_and_b64 exec, exec, vcc"); a("s_cbranch_scc1 L_qpoll")
    a("s_mov_b64 exec, -1")
    a("v_lshlrev_b32 v1, 3, v0"); a(f"v_add_u32 v1, {L_QS:#x}, v1")
    a("ds_write_b64 v1, v[26:27]"); a("ds_write_b64 v1, v[30:31] offset:512")
    a("v_xor_b32 v34, v25, v21"); a("v_xor_b32 v35, v29, v21"); a("v_or_b32 v34, v34, v35")
    a("v_cmp_ne_u32 vcc, 0, v34")
    a("s_cmp_eq_u64 vcc, 0"); a(f"s_cselect_b32 {sT0}, 2, 1"); a(f"v_mov_b32 v1, {sT0}")
    a(f"ds_write_b32 v7, v1 offset:{F_QRDY}")
    lab("L_qdone")
    lds_spin("v7", F_QRDY, sSAME)
    stamp(2)
    a("v_and_b32 v1, 1, v0"); a("v_lshlrev_b32 v1, 9, v1"); a("v_lshl_add_u32 v1, v12, 4, v1"); a(f"v_add_u32 v4, {L_QS:#x}, v1")
    for u in range(8): a(f"ds_read_b128 {vr(64+4*u,4)}, v4 offset:{64*u}")
    a(f"s_lshl_b32 s80, {sH}, 15")
    a("v_xor_b32 v1, v12, v13"); a("v_lshlrev_b32 v1, 4, v1"); a("v_lshl_add_u32 v1, v13, 9, v1"); a("v_add_u32 v16, s80, v1")
    for u in range(1, 4): a(f"v_xor_b32 v{16+u}, {64*u}, v16")
    lds_spin("v6", F_KRDY)
    stamp(3)
    seq = [(t, u) for u in range(8) for t in range(4)]
    def kread(k):
        t, u = seq[k]
        a(f"ds_read_b128 {vr(96+4*k,4)}, v{16+(u&3)} offset:{8192*t+256*(u>>2)}")
    for k in range(12): kread(k)
    for k in range(32):
        if k + 12 < 32: kread(k + 12)
        t, u = seq[k]
        a(f"s_waitcnt lgkmcnt({min(12, 31-k)})")
        a(f"v_mfma_f32_16x16x32_bf16 {vr(20+4*t,4)}, {vr(64+4*u,4)}, {vr(96+4*k,4)}, " + ("0" if u == 0 else vr(20+4*t,4)))
    for t in range(1, 4):
        a(f"v_cmp_eq_u32 vcc, {t}, v12")
        a(f"v_cndmask_b32 v20, v20, v{20+4*t}, vcc"); a(f"v_cndmask_b32 v21, v21, v{21+4*t}, vcc")
    c = f2u(1.4426950408889634 / 16)
    a(f"v_mul_f32 v20, {c:#x}, v20"); a(f"v_mul_f32 v21, {c:#x}, v21")
    a("v_mov_b32 v24, v20"); a("v_mov_b32 v26, v21")
    allreduce("v_max_f32", [24, 26], [28, 29])
    a("v_sub_f32 v20, v20, v24"); a("v_sub_f32 v21, v21, v26")
    a("v_exp_f32 v25, v20"); a("v_exp_f32 v27, v21")
    a("v_and_b32 v1, 3, v0"); a("v_lshlrev_b32 v1, 6, v1"); a("v_and_b32 v4, 60, v0"); a("v_add_u32 v1, v1, v4")
    a(f"s_lshl_b32 {sT0}, {sH}, 9"); a(f"s_add_u32 {sT0}, {sT0}, {L_PT:#x}"); a(f"v_add_u32 v1, {sT0}, v1")
    a("v_cvt_pk_bf16_f32 v20, v25, v25"); a("v_cvt_pk_bf16_f32 v21, v27, v27")
    a("ds_write_b32 v1, v20"); a("ds_write_b32 v1, v21 offset:256")
    a(f"ds_write_b32 v6, v5 offset:{F_PRDY}")
    allreduce("v_add_f32", [25, 27], [28, 29])
    for r in range(24, 28): a(f"v_min_u32 v{r}, -2, v{r}")
    a(f"s_lshl_b32 {sT0}, {sWL}, 6"); a(f"s_lshl_b32 {sT1}, {sH}, 4"); a(f"s_add_u32 {sT0}, {sT0}, {sT1}"); a(f"s_add_u32 {sT0}, {sT0}, {WS_ST:#x}")
    a("s_mov_b64 exec, 1")
    store_local([f"buffer_store_dwordx4 v[24:27], v14, {WS}, {sT0} offen"])
    a("s_mov_b64 exec, -1")
    stamp(4)
    a(f"s_lshr_b32 {sT0}, {sWL}, 4"); a(f"s_lshl_b32 {sT0}, {sT0}, 10"); a(f"s_add_u32 {sT0}, {sT0}, {WS_ST:#x}")
    poll([f"buffer_load_dwordx4 v[32:35], v15, {WS}, {sT0} offen"], range(32, 36))
    a("v_mov_b32 v36, v32"); a("v_mov_b32 v37, v34")
    allreduce("v_max_f32", [36, 37], [28, 29])
    a("v_sub_f32 v32, v32, v36"); a("v_sub_f32 v34, v34, v37"); a("v_sub_f32 v24, v24, v36"); a("v_sub_f32 v26, v26, v37")
    a("v_exp_f32 v32, v32"); a("v_exp_f32 v34, v34"); a("v_exp_f32 v24, v24"); a("v_exp_f32 v26, v26")
    a("v_mul_f32 v33, v33, v32"); a("v_mul_f32 v35, v35, v34")
    allreduce("v_add_f32", [33, 35], [28, 29])
    a("v_rcp_f32 v33, v33"); a("v_rcp_f32 v35, v35")
    a(f"s_lshl_b32 {sT0}, {sH}, 3"); a(f"v_add_u32 v1, {sT0}, v7")
    a("v_mul_f32 v24, v24, v33"); a("v_mul_f32 v25, v26, v35")
    a(f"ds_write_b64 v1, v[24:25] offset:{F_FAC}")
    a(f"ds_write_b32 v6, v5 offset:{F_FRDY}")
    stamp(5)
    a("v_lshlrev_b32 v4, 7, v0"); a(f"s_lshl_b32 {sT0}, {sH}, 13"); a(f"s_add_u32 {sT0}, {sT0}, {WS_Q:#x}")
    a(f"s_mov_b32 {sCNT}, 0")
    lab("L_allpoll")
    a(f"buffer_load_dwordx2 v[24:25], v4, {WS}, {sT0} offen sc1")
    a(f"s_add_u32 {sCNT}, {sCNT}, 1"); a(f"s_cmp_gt_u32 {sCNT}, {SPIN_MEM}"); a("s_cbranch_scc1 L_exit")
    a("s_waitcnt vmcnt(0)")
    a("v_xor_b32 v24, v24, v2"); a("v_xor_b32 v25, v25, v3"); a("v_and_b32 v25, -16, v25"); a("v_or_b32 v24, v24, v25")
    a("v_cmp_ne_u32 vcc, 0, v24")
    a("s_and_b64 exec, exec, vcc"); a("s_cbranch_scc1 L_allpoll")
    a("s_mov_b64 exec, -1")
    stamp(6)
    srd(60, 24, 4096*448*2); srd(64, 28, 448*1792*2); srd(68, 30, 448*1792*2); srd(72, 32, 1792*448*2)
    srd(76, 34, 2*448*2); srd(52, 16, 2*448*2)
    a("v_add_u32 v11, s80, v11")
    a("v_mov_b32 v38, 0"); a("v_mov_b32 v39, 0")
    a(f"s_cmp_lt_u32 {sI}, 28"); a("s_cbranch_scc0 L_nowo")
    a(f"s_lshl_b32 {sT0}, {sX}, 2"); a(f"s_add_u32 {sT0}, {sT0}, {sH}"); a(f"s_mul_i32 {sT0}, {sT0}, {128*896}")
    a(f"s_lshl_b32 {sT1}, {sI}, 5"); a(f"s_add_u32 {sT0}, {sT0}, {sT1}")
    a("s_mov_b32 m0, s80")
    for u in range(4):
        a(f"buffer_load_dwordx4 v9, {WO}, {sT0} offen lds")
        if u < 3: a(f"s_add_u32 {sT0}, {sT0}, {32*896}"); a("s_add_u32 m0, m0, 1024")
    a(f"s_cmp_eq_u32 {sX}, 0"); a("s_cbranch_scc0 L_nowo")
    a("v_bfe_u32 v1, v0, 3, 1"); a("v_mul_u32_u24 v1, 896, v1"); a("v_and_b32 v4, 7, v0"); a("v_lshl_add_u32 v1, v4, 2, v1")
    a(f"buffer_load_dword v39, v1, {X}, {sT1} offen")
    lab("L_nowo")
    a(f"s_mul_i32 s82, {sX}, 7"); a(f"s_add_u32 s82, s82, {sI}"); a("s_sub_u32 s82, s82, 25") if not stamps else None
    if stamps:
        L.pop(); L.pop()
        a(f"s_mul_i32 s83, {sX}, 7"); a(f"s_add_u32 s83, s83, {sI}"); a("s_sub_u32 s83, s83, 25")
    PHI = "s83" if stamps else "s82"
    a(f"s_cmp_ge_u32 {sI}, 25"); a("s_cbranch_scc0 L_noffnw")
    a(f"s_mul_i32 {sT0}, {sH}, {32*3584}"); a(f"s_lshl_b32 {sT1}, {PHI}, 6"); a(f"s_add_u32 {sT0}, {sT0}, {sT1}")
    a(f"s_add_u32 {sT1}, {sT0}, 32")
    a(f"s_add_u32 m0, s80, 4096")
    for u in range(4):
        for t, (m, so) in enumerate(((WG, sT0), (WG, sT1), (WU, sT0), (WU, sT1))):
            a(f"buffer_load_dwordx4 v10, {m}, {so} offen lds")
            a("s_add_u32 m0, m0, 1024")
        if u < 3: a(f"s_add_u32 {sT0}, {sT0}, {128*3584}"); a(f"s_add_u32 {sT1}, {sT1}, {128*3584}")
    a(f"s_mul_i32 {sT0}, {PHI}, {32*896}"); a(f"s_mul_i32 {sT1}, {sH}, 224"); a(f"s_add_u32 {sT0}, {sT0}, {sT1}")
    for t in range(7):
        a(f"buffer_load_dwordx4 v9, {WD}, {sT0} offen lds")
        if t < 6: a(f"s_add_u32 {sT0}, {sT0}, 32"); a("s_add_u32 m0, m0, 1024")
    a("s_waitcnt vmcnt(0)")
    for k in range(23):
        a(f"ds_read_b64_tr_b16 {vr(80+4*k,2)}, v11 offset:{4096+1024*k}")
        a(f"ds_read_b64_tr_b16 {vr(82+4*k,2)}, v11 offset:{4096+1024*k+128}")
        if k % 6 == 5: a("s_waitcnt lgkmcnt(0)")
    for r in range(4): a(f"v_mov_b32 v{40+r}, 0x3f803f80")
    a("s_waitcnt lgkmcnt(0)")
    for u in range(4):
        for t in range(4):
            a(f"v_mfma_f32_16x16x32_bf16 {vr(20+4*t,4)}, v[40:43], {vr(80+16*u+4*t,4)}, " + ("0" if u == 0 else vr(20+4*t,4)))
    a("v_bfe_u32 v1, v0, 4, 1"); a("v_cmp_eq_u32 vcc, 1, v1")
    a("v_cndmask_b32 v46, v20, v24, vcc"); a("v_cndmask_b32 v47, v28, v32, vcc")
    a("v_and_b32 v1, 7, v0"); a("v_mul_u32_u24 v48, 3584, v1"); a("v_bfe_u32 v1, v0, 3, 1"); a("v_lshl_add_u32 v48, v1, 5, v48")
    a("v_lshrrev_b32 v1, 5, v0"); a("v_lshl_add_u32 v48, v1, 7, v48"); a("v_bfe_u32 v1, v0, 4, 1"); a("v_lshl_add_u32 v48, v1, 4, v48")
    a(f"s_cmp_ge_u32 {sH}, 2"); a(f"s_cselect_b32 {sT0}, 0x10000000, 0"); a(f"v_add_u32 v49, {sT0}, v48")
    a(f"s_lshl_b32 {sT0}, {sH}, 10"); a(f"s_add_u32 {sT0}, {sT0}, {L_R3:#x}"); a(f"v_add_u32 v50, {sT0}, v15")
    a(f"v_add_u32 v51, {L_R3:#x}, v15")
    a(f"s_lshl_b32 {sT0}, {sH}, 8"); a(f"s_add_u32 {sT0}, {sT0}, {L_R3S:#x}"); a("v_lshlrev_b32 v1, 2, v0"); a(f"v_add_u32 v52, {sT0}, v1")
    a("v_lshrrev_b32 v1, 5, v0"); a("v_mul_u32_u24 v1, 160, v1"); a(f"v_add_u32 v53, {L_R3S:#x}, v1")
    a(f"s_lshl_b32 {sT0}, {sH}, 7"); a(f"s_add_u32 {sT0}, {sT0}, {L_HH:#x}"); a("v_lshlrev_b32 v1, 1, v0"); a(f"v_add_u32 v54, {sT0}, v1")
    a("v_and_b32 v1, 1, v0"); a("v_lshlrev_b32 v1, 6, v1"); a("v_lshl_add_u32 v1, v12, 4, v1"); a(f"v_add_u32 v1, {sT0}, v1")
    a("v_lshrrev_b32 v4, 1, v13"); a(f"v_mov_b32 v55, {L_FL + F_ZERO:#x}")
    for t in range(7):
        a(f"v_cmp_eq_u32 vcc, {t}, v4"); a(f"v_cndmask_b32 v{56+t}, v55, v1, vcc")
    a("v_and_b32 v1, 1, v0"); a("v_mul_u32_u24 v1, 1792, v1"); a("v_lshl_add_u32 v1, v4, 6, v1"); a("v_lshl_add_u32 v63, v12, 4, v1")
    lab("L_noffnw")
    a(f"s_cmp_lt_u32 {sI}, 28"); a("s_cbranch_scc0 L_nowo2")
    a("s_waitcnt vmcnt(0)")
    for k in range(4):
        a(f"ds_read_b64_tr_b16 {vr(64+4*k,2)}, v11 offset:{1024*k}")
        a(f"ds_read_b64_tr_b16 {vr(66+4*k,2)}, v11 offset:{1024*k+128}")
    a("v_lshlrev_b32 v38, 16, v39"); a("v_and_b32 v39, 0xffff0000, v39")
    a("v_lshlrev_b32 v1, 4, v12"); a("v_lshl_add_u32 v4, v13, 10, v1")
    a(f"s_lshl_b32 {sT0}, {sX}, 15"); a(f"s_lshl_b32 {sT1}, {sH}, 8"); a(f"s_add_u32 {sT0}, {sT0}, {sT1}"); a(f"s_add_u32 {sT0}, {sT0}, {WS_O:#x}")
    a(f"s_add_u32 {sT1}, {sT0}, 16384")
    a(f"s_lshl_b32 {sT2}, {sH}, 8"); a(f"s_add_u32 {sT2}, {sT2}, {L_RED2:#x}"); a("v_lshlrev_b32 v1, 2, v0"); a(f"v_add_u32 v36, {sT2}, v1")
    a("v_lshlrev_b32 v37, 3, v13"); a(f"v_add_u32 v37, {L_RED2:#x}, v37")
    a("s_waitcnt lgkmcnt(0)")
    stamp(7)
    poll([f"buffer_load_dwordx4 {vr(176+16*bb+4*u,4)}, v4, {WS}, {(sT0, sT1)[bb]} offen offset:{64*u}" for bb in range(2) for u in range(4)],
         range(176, 208))
    stamp(8)
    for u in range(4):
        for bb in range(2):
            a(f"v_mfma_f32_16x16x32_bf16 {vr(20+4*bb,4)}, {vr(176+16*bb+4*u,4)}, {vr(64+4*u,4)}, " + ("0" if u == 0 else vr(20+4*bb,4)))
    a("v_add_f32 v20, v20, v21"); a("v_add_f32 v22, v22, v23"); a("v_add_f32 v24, v24, v25"); a("v_add_f32 v26, v26, v27")
    a("v_add_f32 v20, v20, v22"); a("v_add_f32 v24, v24, v26")
    a("v_permlane16_swap_b32 v20, v24"); a("v_add_f32 v20, v20, v24")
    a("ds_write_b32 v36, v20")
    a("s_waitcnt lgkmcnt(0)")
    lab("L_nowo2")
    a("s_barrier")
    a(f"s_cmp_lt_u32 {sI}, 28"); a("s_cbranch_scc0 L_ffn")
    a(f"s_cmp_eq_u32 {sH}, 0"); a("s_cbranch_scc0 L_nop")
    for k in range(8): a(f"ds_read_b64 {vr(20+2*k,2)}, v37 offset:{128*k}")
    a(f"s_mul_i32 {sT0}, {sX}, 28"); a(f"s_add_u32 {sT0}, {sT0}, {sI}"); a(f"s_lshl_b32 {sT0}, {sT0}, 7"); a(f"s_add_u32 {sT0}, {sT0}, {WS_P:#x}")
    a("v_lshlrev_b32 v1, 2, v0")
    a("s_waitcnt lgkmcnt(0)")
    for st in (2, 4, 8):
        for k in range(0, 16, 2 * st): a(f"v_pk_add_f32 {vr(20+k,2)}, {vr(20+k,2)}, {vr(20+k+st,2)}")
    a("v_pk_add_f32 v[20:21], v[20:21], v[38:39]")
    a("v_cvt_pk_bf16_f32 v20, v20, v21"); a("v_min_u32 v20, -2, v20")
    a("s_mov_b64 exec, 0xffff")
    a(f"buffer_store_dword v20, v1, {WS}, {sT0} offen sc1")
    a("s_mov_b64 exec, -1")
    stamp(9)
    lab("L_nop")
    a(f"s_cmp_ge_u32 {sI}, 25"); a("s_cbranch_scc0 L_final")
    lab("L_ffn")
    a(f"s_lshl_b32 {sT0}, {sH}, 8"); a(f"s_add_u32 {sT0}, {sT0}, {WS_P:#x}")
    a(f"s_mul_i32 {sT1}, {PHI}, 3584"); a(f"s_mul_i32 {sT2}, {sH}, 448"); a(f"s_add_u32 {sT1}, {sT1}, {sT2}"); a(f"s_add_u32 {sT1}, {sT1}, {WS_F:#x}")
    poll([f"buffer_load_dwordx4 {vr(176+4*u,4)}, v{49 if u == 3 else 48}, {WS}, {sT0} offen offset:{1024*u}" for u in range(4)], range(176, 192))
    stamp(10)
    for u in range(4):
        A = vr(176+4*u, 4)
        a(f"v_mfma_f32_16x16x32_bf16 v[192:195], {A}, {A}, " + ("0" if u == 0 else "v[192:195]"))
        a(f"v_mfma_f32_16x16x32_bf16 v[196:199], {A}, v[40:43], " + ("0" if u == 0 else "v[196:199]"))
    for u in range(4):
        A = vr(176+4*u, 4)
        for t in range(4):
            a(f"v_mfma_f32_16x16x32_bf16 {vr(20+4*t,4)}, {A}, {vr(80+16*u+4*t,4)}, " + ("0" if u == 0 else vr(20+4*t,4)))
        if u == 2:
            a("v_add_f32 v192, v192, v193"); a("v_add_f32 v194, v194, v195"); a("v_add_f32 v196, v196, v197"); a("v_add_f32 v198, v198, v199")
            a("v_add_f32 v192, v192, v194"); a("v_add_f32 v196, v196, v198")
    a("v_add_f32_dpp v192, v192, v192 quad_perm:[1,0,3,2] row_mask:0xf bank_mask:0xf")
    a("v_add_f32_dpp v192, v192, v192 quad_perm:[2,3,0,1] row_mask:0xf bank_mask:0xf")
    a("v_add_f32_dpp v192, v192, v192 row_half_mirror row_mask:0xf bank_mask:0xf")
    a("v_permlane16_swap_b32 v192, v196"); a("v_add_f32 v192, v192, v196")
    a("ds_write_b32 v52, v192")
    for t in range(4):
        b0 = 20 + 4 * t
        a(f"v_add_f32 v{b0}, v{b0}, v{b0+1}"); a(f"v_add_f32 v{b0+2}, v{b0+2}, v{b0+3}")
    for t in range(4):
        b0 = 20 + 4 * t
        a(f"v_add_f32 v{b0}, v{b0}, v{b0+2}")
    a("v_permlane16_swap_b32 v20, v24"); a("v_permlane16_swap_b32 v28, v32")
    a("v_add_f32 v44, v20, v24"); a("v_add_f32 v45, v28, v32")
    a("ds_write_b128 v50, v[44:47]")
    a("s_waitcnt lgkmcnt(0)")
    a("s_barrier")
    for w in range(4): a(f"ds_read2_b32 {vr(192+2*w,2)}, v53 offset0:{64*w} offset1:{64*w+16}")
    for w in range(4): a(f"ds_read_b128 {vr(20+4*w,4)}, v51 offset:{1024*w}")
    a("s_waitcnt lgkmcnt(4)")
    a("v_pk_add_f32 v[192:193], v[192:193], v[194:195]"); a("v_pk_add_f32 v[196:197], v[196:197], v[198:199]")
    a("v_pk_add_f32 v[192:193], v[192:193], v[196:197]")
    a(f"v_mul_f32 v193, {f2u(1/448):#x}, v193"); a(f"v_mul_f32 v192, {f2u(1/448):#x}, v192")
    a("v_fma_f32 v192, -v193, v193, v192"); a("v_max_f32 v192, 0, v192")
    a(f"v_add_f32 v192, {f2u(1e-5):#x}, v192"); a("v_rcp_f32 v192, v192")
    a("s_waitcnt lgkmcnt(0)")
    for j in (0, 2):
        a(f"v_pk_add_f32 {vr(20+j,2)}, {vr(20+j,2)}, {vr(24+j,2)}"); a(f"v_pk_add_f32 {vr(28+j,2)}, {vr(28+j,2)}, {vr(32+j,2)}")
    for j in (0, 2): a(f"v_pk_add_f32 {vr(20+j,2)}, {vr(20+j,2)}, {vr(28+j,2)}")
    a("v_fma_f32 v20, -v193, v22, v20"); a("v_fma_f32 v21, -v193, v23, v21")
    a("v_mul_f32 v20, v20, v192"); a("v_mul_f32 v20, v20, v21")
    a("v_cvt_pk_bf16_f32 v20, v20, v20")
    a("ds_write_b16 v54, v20")
    for t in range(7): a(f"ds_read_b128 {vr(176+4*t,4)}, v{56+t}")
    for t in range(7):
        a(f"s_waitcnt lgkmcnt({6-t})")
        a(f"v_mfma_f32_16x16x32_bf16 v[20:23], {vr(144+4*t,4)}, {vr(176+4*t,4)}, " + ("0" if t == 0 else "v[20:23]"))
    a("s_mov_b32 exec_lo, 0x3fff3fff"); a("s_mov_b32 exec_hi, 0x3fff3fff")
    for j in range(4): a(f"v_min_u32 v{20+j}, -2, v{20+j}")
    a(f"buffer_store_dwordx4 v[20:23], v63, {WS}, {sT1} offen sc1")
    a("s_mov_b64 exec, -1")
    stamp(11)
    a("s_branch L_exit")
    lab("L_final")
    a(f"s_cmp_eq_u32 {sH}, 1"); a("s_cbranch_scc0 L_exit")
    a(f"s_cmp_lt_u32 {sI}, 4"); a("s_cbranch_scc0 L_exit")
    a(f"s_cmp_lt_u32 {sX}, 7"); a("s_cbranch_scc0 L_exit")
    a(f"s_lshl_b32 {sT0}, {sX}, 2"); a(f"s_add_u32 s80, {sT0}, {sI}")
    a(f"s_cmp_ge_u32 s80, 14"); a(f"s_cselect_b32 {sT1}, 1, 0")
    a(f"s_mul_i32 {sT2}, {sT1}, 14"); a(f"s_sub_u32 {sT2}, s80, {sT2}")
    a("v_lshrrev_b32 v1, 3, v0"); a("v_mul_u32_u24 v8, 3584, v1"); a("v_and_b32 v4, 7, v0")
    a("v_lshl_add_u32 v9, v4, 4, v8")
    a("v_bfe_u32 v1, v0, 2, 1"); a("v_lshl_add_u32 v8, v1, 7, v8"); a("v_and_b32 v1, 3, v0"); a("v_lshl_add_u32 v8, v1, 3, v8")
    a("v_lshlrev_b32 v10, 3, v4"); a("v_lshl_add_u32 v10, v12, 1, v10")
    a(f"s_lshl_b32 {sT0}, {sT2}, 8"); a(f"s_lshl_b32 {sT3}, {sT1}, 5"); a(f"s_add_u32 {sT0}, {sT0}, {sT3}"); a(f"s_add_u32 {sT0}, {sT0}, {WS_P:#x}")
    a(f"s_lshl_b32 s16, s80, 7"); a(f"s_add_u32 s16, s16, {WS_F:#x}")
    for u in range(1, 7): a(f"s_add_u32 s{16+u}, s16, {8*3584*u}")
    a(f"s_lshl_b32 s23, s80, 6")
    a(f"buffer_load_ushort v11, v10, {OUT}, s23 offen")
    poll([f"buffer_load_dwordx2 v[24:25], v8, {WS}, {sT0} offen"], [24, 25])
    a("v_lshlrev_b32 v20, 16, v24"); a("v_and_b32 v21, 0xffff0000, v24"); a("v_lshlrev_b32 v22, 16, v25"); a("v_and_b32 v23, 0xffff0000, v25")
    stamp(10)
    poll([f"buffer_load_dwordx4 {vr(24+4*u,4)}, v9, {WS}, s{16+u} offen" for u in range(7)], range(24, 52))
    stamp(11)
    for st in (4, 8, 16):
        for k in range(0, 32, 2 * st):
            for j in (0, 2): a(f"v_pk_add_f32 {vr(20+k+j,2)}, {vr(20+k+j,2)}, {vr(20+k+st+j,2)}")
    a("v_permlane32_swap_b32 v20, v22"); a("v_permlane32_swap_b32 v21, v23")
    a("v_add_f32 v20, v20, v22"); a("v_add_f32 v21, v21, v23")
    a("v_permlane16_swap_b32 v20, v21"); a("v_add_f32 v20, v20, v21")
    a("v_add_f32_dpp v20, v20, v20 row_ror:8 row_mask:0xf bank_mask:0xf")
    a("v_cvt_pk_bf16_f32 v20, v20, v20")
    a("s_mov_b32 exec_lo, 0x00ff00ff"); a("s_mov_b32 exec_hi, 0x00ff00ff")
    a(f"buffer_store_short v20, v10, {OUT}, s23 offen")
    a("s_mov_b64 exec, 1")
    a("s_cmp_eq_u32 s80, 0"); a("s_cbranch_scc0 L_noep")
    a(f"buffer_store_dwordx2 v[2:3], v14, {WS}, 0 offen sc1")
    lab("L_noep")
    a("s_mov_b64 exec, -1")
    stamp(12)
    lab("L_exit")
    if stamps:
        a("s_mov_b64 exec, -1")
        a("s_waitcnt vmcnt(0) lgkmcnt(0)")
        a("s_memrealtime s[100:101]"); a("s_waitcnt lgkmcnt(0)"); a("s_mov_b32 s98, s100"); a("s_mov_b32 s99, s82")
        for k in range(16): a(f"v_mov_b32 v{20+k}, s{84+k}")
        a(f"s_lshl_b32 {sT0}, s2, 3"); a(f"s_add_u32 {sT0}, {sT0}, {sWAVE}"); a(f"s_lshl_b32 {sT0}, {sT0}, 6"); a(f"s_add_u32 {sT0}, {sT0}, {WS_STAMP:#x}")
        a("v_mov_b32 v1, 0"); a("s_mov_b64 exec, 1")
        for k in range(4): a(f"buffer_store_dwordx4 {vr(20+4*k,4)}, v1, {WS}, {sT0} offen offset:{16*k}")
    lab("L_end")
    a("s_endpgm")
    body = pad(L)
    body += ['.section .rodata,"a"', ".p2align 6", f".amdhsa_kernel {NAME}_kernel",
             "  .amdhsa_next_free_vgpr 224", "  .amdhsa_next_free_sgpr 102", "  .amdhsa_accum_offset 224",
             "  .amdhsa_group_segment_fixed_size 0", "  .amdhsa_kernarg_size 96", "  .amdhsa_user_sgpr_count 2",
             "  .amdhsa_user_sgpr_kernarg_segment_ptr 1", "  .amdhsa_system_sgpr_workgroup_id_x 1",
             "  .amdhsa_float_denorm_mode_32 3", ".end_amdhsa_kernel"]
    return "\n".join(body) + "\n"

if __name__ == "__main__":
    kw = {}
    for arg in sys.argv[2:]:
        k, v = arg.split("="); kw[k] = int(v)
    open(sys.argv[1], "w").write(gen(**kw))
```

```python
import sys, struct
from asmlib import pad
NAME = "sequential_preLN__sliding_block_cached__glu_gated_bilinear__decode"

def f2u(x): return struct.unpack("<I", struct.pack("<f", x))[0]

WS_E, WS_Q, WS_ST, WS_O, WS_P, WS_F = 0x0, 0x1000, 0x10000, 0x20000, 0x60000, 0x70000
WS_STAMP = 0x100000
WS_SIZE = 0x200000
L_WQ, L_QS, L_PT, L_FL, L_RED, L_RED2 = 0x20000, 0x24000, 0x24400, 0x24C00, 0x25000, 0x27000
L_R3, L_R3S, L_HH = 0x20000, 0x21000, 0x22000
LDS_SIZE = 0x27400
F_QRDY, F_KRDY, F_PRDY, F_CNT, F_FAC, F_FRDY, F_ZERO = 0, 16, 32, 48, 64, 96, 112
SPIN_LDS, SPIN_MEM = 1 << 21, 1 << 18

def gen(window=8, stamps=False, force_sc1=False, rotmul=1, padto=0, kvnt=1, bias=0):
    L = []
    def a(s): L.append("    " + s)
    def lab(s): L.append(s + ":")
    uid = [0]
    def new(p): uid[0] += 1; return f"L_{p}{uid[0]}"
    sWAVE, sX, sI, sB, sS, sWL, sH = "s3", "s4", "s5", "s6", "s7", "s8", "s9"
    sT0, sT1, sT2, sT3, sCNT, sSAME = "s10", "s11", "s12", "s13", "s14", "s15"
    K, V, WS, X, WQ, WO, WG, WU, WD, OUT = (f"s[{n}:{n+3}]" for n in range(40, 80, 4))
    def srd(n, lo, size):
        a(f"s_mov_b32 s{n}, s{lo}"); a(f"s_mov_b32 s{n+1}, s{lo+1}")
        a(f"s_mov_b32 s{n+2}, {size:#x}"); a(f"s_mov_b32 s{n+3}, 0x20000")
    def stamp(k):
        if stamps:
            a("s_memrealtime s[100:101]"); a("s_waitcnt lgkmcnt(0)"); a(f"s_mov_b32 s{84+k}, s100")
    def vr(b, n): return f"v[{b}:{b+n-1}]"
    def lds_spin(vaddr, off, dst=sT0):
        l, d = new("spin"), new("got")
        a(f"s_mov_b32 {sCNT}, 0")
        lab(l)
        a(f"ds_read_b32 v1, {vaddr} offset:{off}")
        a(f"s_add_u32 {sCNT}, {sCNT}, 1")
        a("s_waitcnt lgkmcnt(0)")
        a(f"v_readfirstlane_b32 {dst}, v1")
        a(f"s_cmp_lg_u32 {dst}, 0"); a(f"s_cbranch_scc1 {d}")
        a(f"s_cmp_gt_u32 {sCNT}, {SPIN_LDS}"); a("s_cbranch_scc1 L_exit")
        a("s_sleep 1"); a(f"s_branch {l}")
        lab(d)
    def allreduce(op, regs, tmps):
        for sh in (8, 4, 2, 1):
            for r in regs: a(f"{op}_dpp v{r}, v{r}, v{r} row_ror:{sh} row_mask:0xf bank_mask:0xf")
        for sw in ("v_permlane16_swap_b32", "v_permlane32_swap_b32"):
            for r, t in zip(regs, tmps): a(f"v_mov_b32 v{t}, v{r}")
            for r, t in zip(regs, tmps): a(f"{sw} v{r}, v{t}")
            for r, t in zip(regs, tmps): a(f"{op} v{r}, v{r}, v{t}")
    def store_local(text):
        if force_sc1:
            for t in text: a(t + " sc1")
            return
        l1, l2 = new("far"), new("st")
        a(f"s_cmp_eq_u32 {sSAME}, 2"); a(f"s_cbranch_scc0 {l1}")
        for t in text: a(t)
        a(f"s_branch {l2}")
        lab(l1)
        for t in text: a(t + " sc1")
        lab(l2)
    def maxchain(dst, regs):
        regs = list(regs)
        a(f"v_max3_u32 v{dst}, v{regs[0]}, v{regs[1]}, v{regs[2]}") if len(regs) >= 3 else a(f"v_max_u32 v{dst}, v{regs[0]}, v{regs[1]}")
        rest = regs[3:] if len(regs) >= 3 else []
        while rest:
            if len(rest) >= 2:
                a(f"v_max3_u32 v{dst}, v{dst}, v{rest[0]}, v{rest[1]}"); rest = rest[2:]
            else:
                a(f"v_max_u32 v{dst}, v{dst}, v{rest[0]}"); rest = []
    def poll(loads, regs, tmp=1):
        l, d = new("poll"), new("ok")
        a(f"s_mov_b32 {sCNT}, 0")
        lab(l)
        for t in loads: a(t + " sc1")
        a(f"s_add_u32 {sCNT}, {sCNT}, 1")
        a(f"s_cmp_gt_u32 {sCNT}, {SPIN_MEM}"); a("s_cbranch_scc1 L_exit")
        a("s_waitcnt vmcnt(0)")
        maxchain(tmp, regs)
        a(f"v_cmp_eq_u32 vcc, -1, v{tmp}")
        a("s_and_b64 exec, exec, vcc")
        a(f"s_cbranch_scc1 {l}")
        lab(d)
        a("s_mov_b64 exec, -1")

    L.append(f"; @launch grid=(256,1,1) block=(512,1,1) lds={LDS_SIZE}")
    L.append('.amdgcn_target "amdgcn-amd-amdhsa--gfx950"')
    L.append(".text"); L.append(f".globl {NAME}_kernel"); L.append(".p2align 8")
    L.append(f".type {NAME}_kernel,@function"); lab(f"{NAME}_kernel")
    a("s_cmp_ge_u32 s2, 256"); a("s_cbranch_scc1 L_end")
    a("s_load_dwordx16 s[16:31], s[0:1], 0")
    a("s_load_dwordx8 s[32:39], s[0:1], 64")
    if stamps:
        for k in range(16): a(f"s_mov_b32 s{84+k}, 0")
        a("s_memrealtime s[82:83]")
    if padto: a("s_memrealtime s[96:97]")
    a("v_lshrrev_b32 v1, 6, v0")
    a("v_and_b32 v0, 63, v0")
    a(f"v_readfirstlane_b32 {sWAVE}, v1")
    a("v_and_b32 v2, 31, v0"); a("v_lshlrev_b32 v3, 2, v2"); a(f"v_add_u32 v3, {L_FL:#x}, v3"); a("v_mov_b32 v4, 0")
    a("ds_write_b32 v3, v4")
    a(f"s_and_b32 {sX}, s2, 7"); a(f"s_lshr_b32 {sI}, s2, 3")
    a(f"s_lshr_b32 {sB}, {sI}, 4"); a(f"s_and_b32 {sS}, {sI}, 15")
    a(f"s_lshl_b32 {sWL}, {sX}, 5"); a(f"s_add_u32 {sWL}, {sWL}, {sI}")
    a(f"s_and_b32 {sH}, {sWAVE}, 3")
    a(f"s_lshl_b32 {sT0}, {sH}, 2"); a(f"s_add_u32 {sT0}, {sT0}, {L_FL:#x}"); a(f"v_mov_b32 v6, {sT0}")
    a(f"v_mov_b32 v7, {L_FL:#x}")
    a(f"s_cmp_ge_u32 {sWAVE}, 4"); a("s_cbranch_scc1 L_helper")

    a("v_lshrrev_b32 v1, 5, v0"); a("v_xor_b32 v2, v2, v1"); a("v_lshlrev_b32 v2, 4, v2")
    a("v_lshl_add_u32 v8, v1, 9, v2")
    for k in range(1, 8): a(f"v_xor_b32 v{8+k}, {32*k}, v8")
    a(f"s_lshl_b32 {sT0}, {sB}, 3"); a(f"s_add_u32 {sT0}, {sT0}, {sX}"); a(f"s_lshl_b32 {sT0}, {sT0}, 24")
    a(f"s_lshl_b32 {sT1}, {sS}, 17"); a(f"s_add_u32 {sT0}, {sT0}, {sT1}")
    a(f"s_lshl_b32 {sT1}, {sH}, 11"); a(f"s_add_u32 {sT0}, {sT0}, {sT1}")
    a(f"s_add_u32 s80, {sT0}, 0xE00000")
    a(f"s_mul_i32 s81, {sI}, {8192*rotmul}"); a("s_and_b32 s81, s81, 0x1ffff")
    a(f"s_lshl_b32 {sT1}, {sH}, 15"); a(f"s_mov_b32 m0, {sT1}")
    a("s_waitcnt lgkmcnt(0)")
    srd(40, 18, 0x10000000);
    a("s_barrier")
    a(f"s_mov_b32 {sT2}, 0")
    lab("L_kloop")
    for rr in range(4):
        a(f"s_add_u32 {sT0}, s80, s81")
        a(f"buffer_load_dwordx4 v{8+2*rr}, {K}, {sT0} offen nt lds")
        a(f"s_waitcnt vmcnt({window-1})")
        a(f"buffer_load_dwordx4 v{9+2*rr}, {K}, {sT0} offen offset:1024 nt lds")
        a("s_add_u32 s81, s81, 8192"); a("s_and_b32 s81, s81, 0x1ffff")
        a("s_add_u32 m0, m0, 2048")
        a(f"s_waitcnt vmcnt({window-1})")
    a(f"s_add_u32 {sT2}, {sT2}, 1"); a(f"s_cmp_lt_u32 {sT2}, 4"); a("s_cbranch_scc1 L_kloop")
    srd(44, 20, 0x10000000); srd(48, 38, WS_SIZE)
    a("v_lshrrev_b32 v1, 4, v0"); a("v_and_b32 v2, 15, v0"); a("v_lshlrev_b32 v2, 4, v2"); a("v_lshl_add_u32 v16, v1, 9, v2")
    a("v_mov_b32 v5, 1")
    stamp(0)
    n = 0
    for r in range(16):
        a(f"s_add_u32 {sT0}, s80, s81")
        for h in range(2):
            a(f"buffer_load_dwordx4 {vr(64+8*r+4*h,4)}, v16, {V}, {sT0} offen offset:{256*h} nt")
            if h == 1 and r < 15:
                a("s_add_u32 s81, s81, 8192"); a("s_and_b32 s81, s81, 0x1ffff")
            n += 1
            if n < 32: a(f"s_waitcnt vmcnt({window-1})")
            if n == window - 1:
                a(f"ds_write_b32 v6, v5 offset:{F_KRDY}")
                stamp(1)
    stamp(2)
    a("v_and_b32 v1, 1, v0"); a("v_lshlrev_b32 v1, 4, v1"); a("v_mov_b32 v2, 0xffff"); a("v_lshlrev_b32 v2, v1, v2")
    a("v_bfe_u32 v1, v0, 1, 2")
    for r in range(4):
        a(f"v_cmp_eq_u32 vcc, {r}, v1"); a(f"v_cndmask_b32 v{20+r}, 0, v2, vcc")
    a("v_bfe_u32 v1, v0, 3, 1"); a("v_lshlrev_b32 v1, 8, v1"); a("v_lshrrev_b32 v2, 4, v0"); a("v_lshl_add_u32 v1, v2, 6, v1")
    a(f"s_lshl_b32 {sT0}, {sH}, 9"); a(f"s_add_u32 {sT0}, {sT0}, {L_PT:#x}"); a(f"v_add_u32 v17, {sT0}, v1")
    a(f"s_lshl_b32 {sT0}, {sH}, 11"); a(f"s_add_u32 {sT0}, {sT0}, {L_RED:#x}")
    a("v_lshlrev_b32 v1, 4, v0"); a(f"v_add_u32 v18, {sT0}, v1"); a(f"v_add_u32 v19, {L_RED:#x}, v1")
    a("v_lshrrev_b32 v1, 5, v0"); a("v_lshlrev_b32 v1, 2, v1"); a(f"s_lshl_b32 {sT0}, {sH}, 3")
    a(f"s_add_u32 {sT0}, {sT0}, {L_FL + F_FAC:#x}"); a(f"v_add_u32 v4, {sT0}, v1")
    a("v_lshrrev_b32 v1, 5, v0"); a("v_lshlrev_b32 v1, 9, v1"); a("v_and_b32 v2, 15, v0"); a("v_lshl_add_u32 v1, v2, 4, v1")
    a("v_bfe_u32 v2, v0, 4, 1"); a("v_lshl_add_u32 v3, v2, 3, v1")
    a(f"s_lshl_b32 s80, {sWL}, 10"); a(f"s_add_u32 s80, s80, {WS_O:#x}")
    lds_spin("v6", F_PRDY)
    for j in range(4): a(f"ds_read_b128 {vr(24+4*j,4)}, v17 offset:{16*j}")
    a(f"ds_read_b32 v2, v7 offset:{F_QRDY}")
    a("s_waitcnt lgkmcnt(0)")
    a(f"v_readfirstlane_b32 {sSAME}, v2")
    stamp(3)
    def amask(r):
        for j in range(4): a(f"v_and_b32 v{40+4*(r&1)+j}, v{24+r}, v{20+j}")
    amask(0)
    for r in range(16):
        if r == 11:
            lds_spin("v6", F_FRDY)
            a("ds_read_b32 v56, v4")
        if r < 15: amask(r + 1)
        a(f"s_waitcnt vmcnt({30-2*r})")
        for h in range(2):
            c = "0" if r == 0 else vr(48+4*h, 4)
            a(f"v_mfma_f32_16x16x32_bf16 {vr(48+4*h,4)}, {vr(40+4*(r&1),4)}, {vr(64+8*r+4*h,4)}, {c}")
    a("s_waitcnt lgkmcnt(0)")
    stamp(4)
    for j in range(4): a(f"v_mul_f32 v{48+j}, v{48+j}, v56")
    a(f"ds_write_b128 v18, {vr(48,4)}")
    for j in range(4, 8): a(f"v_mul_f32 v{48+j}, v{48+j}, v56")
    a(f"ds_write_b128 v18, {vr(52,4)} offset:1024")
    a("s_mov_b64 exec, 1")
    a(f"ds_add_rtn_u32 v1, v7, v5 offset:{F_CNT}")
    a("s_mov_b64 exec, -1")
    a("s_waitcnt lgkmcnt(0)")
    a(f"v_readfirstlane_b32 {sT0}, v1")
    a(f"s_cmp_eq_u32 {sT0}, 3"); a("s_cbranch_scc0 L_exit")
    for hh in range(2):
        for w in range(4): a(f"ds_read_b128 {vr(64+16*hh+4*w,4)}, v19 offset:{2048*w+1024*hh}")
    for hh in range(2):
        b0 = 64 + 16 * hh
        a(f"s_waitcnt lgkmcnt({4-4*hh})")
        for j in (0, 2):
            a(f"v_pk_add_f32 {vr(b0+j,2)}, {vr(b0+j,2)}, {vr(b0+4+j,2)}")
            a(f"v_pk_add_f32 {vr(b0+8+j,2)}, {vr(b0+8+j,2)}, {vr(b0+12+j,2)}")
        for j in (0, 2): a(f"v_pk_add_f32 {vr(b0+j,2)}, {vr(b0+j,2)}, {vr(b0+8+j,2)}")
        a(f"v_cvt_pk_bf16_f32 v{b0}, v{b0}, v{b0+1}"); a(f"v_cvt_pk_bf16_f32 v{b0+1}, v{b0+2}, v{b0+3}")
        a(f"v_min_u32 v{b0}, -2, v{b0}"); a(f"v_min_u32 v{b0+1}, -2, v{b0+1}")
    store_local([f"buffer_store_dwordx2 {vr(64,2)}, v3, {WS}, s80 offen",
                 f"buffer_store_dwordx2 {vr(80,2)}, v3, {WS}, s80 offen offset:256"])
    stamp(5)
    a("s_branch L_exit")

    lab("L_helper")
    a("v_lshrrev_b32 v1, 1, v0"); a("v_and_b32 v2, 1, v0"); a("v_lshlrev_b32 v2, 4, v2")
    a("v_lshl_add_u32 v8, v1, 13, v2")
    a("v_mul_u32_u24 v9, 896, v1"); a("v_add_u32 v9, v9, v2")
    a("v_mul_u32_u24 v10, 3584, v1"); a("v_add_u32 v10, v10, v2")
    a("v_lshrrev_b32 v12, 4, v0"); a("v_and_b32 v13, 15, v0")
    a("v_lshlrev_b32 v1, 3, v13"); a("v_lshl_add_u32 v11, v12, 8, v1")
    a("v_mov_b32 v14, 0"); a("v_lshlrev_b32 v15, 4, v0")
    a("v_mov_b32 v5, 1")
    a(f"s_mov_b32 m0, {L_WQ:#x}")
    a(f"s_lshl_b32 {sT0}, {sWL}, 5")
    a("s_getreg_b32 s81, hwreg(HW_REG_XCC_ID, 0, 4)")
    a("s_waitcnt lgkmcnt(0)")
    srd(56, 22, 448*4096*2); srd(48, 38, WS_SIZE)
    a("s_barrier")
    a(f"s_cmp_eq_u32 {sH}, 0"); a("s_cbranch_scc1 L_q")
    a(f"buffer_load_dwordx2 v[2:3], v14, {WS}, 0 offen sc1")
    a("s_waitcnt vmcnt(0)")
    a("v_add_u32 v2, 0x7f4a7c15, v2"); a("v_add_u32 v3, 0x9e3779b0, v3"); a("v_and_b32 v3, -16, v3")
    a("s_branch L_qdone")
    lab("L_q")
    for u in range(14):
        a(f"buffer_load_dwordx4 v8, {WQ}, {sT0} offen lds")
        if u < 13:
            a(f"s_add_u32 {sT0}, {sT0}, {32*8192}"); a("s_add_u32 m0, m0, 1024")
    srd(52, 16, 2*448*2)
    a("v_cmp_eq_u32 vcc, 2, v13"); a("v_mov_b32 v1, 0x3f803f80"); a("v_cndmask_b32 v1, 0, v1, vcc")
    for r in range(56): a(f"v_mov_b32 v{64+r}, v1")
    a("v_mul_u32_u24 v1, 896, v13"); a("v_lshl_add_u32 v1, v12, 4, v1")
    a("s_mov_b32 exec_lo, 0x00030003"); a("s_mov_b32 exec_hi, 0x00030003")
    for u in range(14): a(f"buffer_load_dwordx4 {vr(64+4*u,4)}, v1, {X}, 0 offen offset:{64*u}")
    a("s_mov_b64 exec, -1")
    a(f"buffer_load_dwordx2 v[2:3], v14, {WS}, 0 offen sc1")
    for r in range(4): a(f"v_mov_b32 v{20+r}, -1")
    a(f"s_lshl_b32 {sT0}, {sWL}, 10"); a(f"s_add_u32 {sT0}, {sT0}, {WS_O:#x}")
    a(f"buffer_store_dwordx4 v[20:23], v15, {WS}, {sT0} offen sc1")
    a(f"s_cmp_ge_u32 {sI}, 25"); a("s_cbranch_scc0 L_noclrF")
    a(f"s_mul_i32 {sT0}, {sX}, 7"); a(f"s_add_u32 {sT0}, {sT0}, {sI}"); a(f"s_sub_u32 {sT0}, {sT0}, 25")
    a(f"s_mul_i32 {sT0}, {sT0}, 3584"); a(f"s_add_u32 {sT0}, {sT0}, {WS_F:#x}")
    for k in range(3): a(f"buffer_store_dwordx4 v[20:23], v15, {WS}, {sT0} offen offset:{1024*k} sc1")
    a(f"buffer_store_dwordx4 v[20:23], v15, {WS}, {sT0} offen offset:{2560} sc1")
    lab("L_noclrF")
    a("s_mov_b64 exec, 15")
    a(f"s_lshl_b32 {sT0}, {sWL}, 6"); a(f"s_add_u32 {sT0}, {sT0}, {WS_ST:#x}")
    a(f"buffer_store_dwordx4 v[20:23], v15, {WS}, {sT0} offen sc1")
    a(f"s_cmp_lt_u32 {sI}, 28"); a("s_cbranch_scc0 L_noclrP")
    a("s_mov_b64 exec, 0xff")
    a(f"s_mul_i32 {sT0}, {sX}, 28"); a(f"s_add_u32 {sT0}, {sT0}, {sI}"); a(f"s_lshl_b32 {sT0}, {sT0}, 7"); a(f"s_add_u32 {sT0}, {sT0}, {WS_P:#x}")
    a(f"buffer_store_dwordx4 v[20:23], v15, {WS}, {sT0} offen sc1")
    lab("L_noclrP")
    a("s_mov_b64 exec, -1")
    a(f"v_add_u32 v1, {L_WQ:#x}, v11")
    a("s_waitcnt vmcnt(0)")
    stamp(0)
    for u in range(14):
        a(f"ds_read_b64_tr_b16 {vr(128+4*u,2)}, v1 offset:{1024*u}")
        a(f"ds_read_b64_tr_b16 {vr(130+4*u,2)}, v1 offset:{1024*u+128}")
        a(f"v_mfma_f32_16x16x32_bf16 v[20:23], {vr(64+4*u,4)}, {vr(64+4*u,4)}, " + ("0" if u == 0 else "v[20:23]"))
        if u >= 5: a("s_waitcnt lgkmcnt(10)")
    a("v_add_u32 v2, 0x7f4a7c15, v2"); a("v_add_u32 v3, 0x9e3779b0, v3"); a("v_and_b32 v3, -16, v3")
    a("s_waitcnt lgkmcnt(0)")
    for u in range(14):
        a(f"v_mfma_f32_16x16x32_bf16 v[24:27], {vr(128+4*u,4)}, {vr(64+4*u,4)}, " + ("0" if u == 0 else "v[24:27]"))
    a(f"v_readlane_b32 {sT0}, v20, 0"); a(f"v_readlane_b32 {sT1}, v21, 1")
    a(f"v_readlane_b32 {sT2}, v22, 0"); a(f"v_readlane_b32 {sT3}, v22, 1")
    a("v_and_b32 v1, 1, v0"); a("v_cmp_eq_u32 vcc, 1, v1")
    a(f"v_mov_b32 v28, {sT0}"); a(f"v_mov_b32 v29, {sT1}"); a(f"v_mov_b32 v30, {sT2}"); a(f"v_mov_b32 v31, {sT3}")
    a("v_cndmask_b32 v28, v28, v29, vcc"); a("v_cndmask_b32 v30, v30, v31, vcc")
    a(f"v_mul_f32 v30, {f2u(1/448):#x}, v30")
    a(f"v_mul_f32 v28, {f2u(1/448):#x}, v28")
    a("v_fma_f32 v28, -v30, v30, v28"); a("v_max_f32 v28, 0, v28")
    a(f"v_add_f32 v28, {f2u(1e-5):#x}, v28"); a("v_rsq_f32 v28, v28")
    for j in range(4): a(f"v_mov_b32_dpp v{32+j}, v{24+j} quad_perm:[2,2,2,2] row_mask:0xf bank_mask:0xf")
    for j in range(4): a(f"v_fma_f32 v{24+j}, -v30, v{32+j}, v{24+j}")
    for j in range(4): a(f"v_mul_f32 v{24+j}, v{24+j}, v28")
    a("v_mov_b32 v20, v2"); a("v_or_b32 v21, s81, v3")
    a("v_cvt_pk_bf16_f32 v22, v24, v25"); a("v_cvt_pk_bf16_f32 v23, v26, v27")
    a("v_lshlrev_b32 v1, 6, v13"); a("v_lshl_add_u32 v1, v12, 4, v1")
    a(f"s_lshl_b32 {sT0}, {sWL}, 7"); a(f"s_add_u32 {sT0}, {sT0}, {WS_Q:#x}")
    a("s_mov_b32 exec_lo, 0x00030003"); a("s_mov_b32 exec_hi, 0x00030003")
    a(f"buffer_store_dwordx4 v[20:23], v1, {WS}, {sT0} offen sc1")
    a("s_mov_b64 exec, -1")
    stamp(1)
    a("v_lshrrev_b32 v1, 2, v0"); a("v_lshlrev_b32 v1, 7, v1"); a("v_and_b32 v4, 3, v0"); a("v_lshl_add_u32 v4, v4, 4, v1")
    a(f"s_lshl_b32 {sT0}, {sX}, 12"); a(f"s_lshl_b32 {sT1}, {sB}, 6"); a(f"s_add_u32 {sT0}, {sT0}, {sT1}"); a(f"s_add_u32 {sT0}, {sT0}, {WS_Q:#x}")
    a(f"s_mov_b32 {sCNT}, 0")
    lab("L_qpoll")
    a(f"buffer_load_dwordx4 v[24:27], v4, {WS}, {sT0} offen sc1")
    a(f"buffer_load_dwordx4 v[28:31], v4, {WS}, {sT0} offen offset:2048 sc1")
    a(f"s_add_u32 {sCNT}, {sCNT}, 1"); a(f"s_cmp_gt_u32 {sCNT}, {SPIN_MEM}"); a("s_cbranch_scc1 L_exit")
    a("s_waitcnt vmcnt(0)")
    a("v_xor_b32 v32, v24, v2"); a("v_xor_b32 v33, v28, v2"); a("v_xor_b32 v34, v25, v3"); a("v_xor_b32 v35, v29, v3")
    a("v_or_b32 v34, v34, v35"); a("v_and_b32 v34, -16, v34"); a("v_or3_b32 v32, v32, v33, v34")
    a("v_cmp_ne_u32 vcc, 0, v32")
    a("s_and_b64 exec, exec, vcc"); a("s_cbranch_scc1 L_qpoll")
    a("s_mov_b64 exec, -1")
    a("v_lshlrev_b32 v1, 3, v0"); a(f"v_add_u32 v1, {L_QS:#x}, v1")
    a("ds_write_b64 v1, v[26:27]"); a("ds_write_b64 v1, v[30:31] offset:512")
    a("v_xor_b32 v34, v25, v21"); a("v_xor_b32 v35, v29, v21"); a("v_or_b32 v34, v34, v35")
    a("v_cmp_ne_u32 vcc, 0, v34")
    a("s_cmp_eq_u64 vcc, 0"); a(f"s_cselect_b32 {sT0}, 2, 1"); a(f"v_mov_b32 v1, {sT0}")
    a(f"ds_write_b32 v7, v1 offset:{F_QRDY}")
    lab("L_qdone")
    lds_spin("v7", F_QRDY, sSAME)
    stamp(2)
    a("v_and_b32 v1, 1, v0"); a("v_lshlrev_b32 v1, 9, v1"); a("v_lshl_add_u32 v1, v12, 4, v1"); a(f"v_add_u32 v4, {L_QS:#x}, v1")
    for u in range(8): a(f"ds_read_b128 {vr(64+4*u,4)}, v4 offset:{64*u}")
    a(f"s_lshl_b32 s80, {sH}, 15")
    a("v_xor_b32 v1, v12, v13"); a("v_lshlrev_b32 v1, 4, v1"); a("v_lshl_add_u32 v1, v13, 9, v1"); a("v_add_u32 v16, s80, v1")
    for u in range(1, 4): a(f"v_xor_b32 v{16+u}, {64*u}, v16")
    lds_spin("v6", F_KRDY)
    stamp(3)
    seq = [(t, u) for u in range(8) for t in range(4)]
    def kread(k):
        t, u = seq[k]
        a(f"ds_read_b128 {vr(96+4*k,4)}, v{16+(u&3)} offset:{8192*t+256*(u>>2)}")
    for k in range(12): kread(k)
    for k in range(32):
        if k + 12 < 32: kread(k + 12)
        t, u = seq[k]
        a(f"s_waitcnt lgkmcnt({min(12, 31-k)})")
        a(f"v_mfma_f32_16x16x32_bf16 {vr(20+4*t,4)}, {vr(64+4*u,4)}, {vr(96+4*k,4)}, " + ("0" if u == 0 else vr(20+4*t,4)))
    for t in range(1, 4):
        a(f"v_cmp_eq_u32 vcc, {t}, v12")
        a(f"v_cndmask_b32 v20, v20, v{20+4*t}, vcc"); a(f"v_cndmask_b32 v21, v21, v{21+4*t}, vcc")
    c = f2u(1.4426950408889634 / 16)
    a(f"v_mul_f32 v20, {c:#x}, v20"); a(f"v_mul_f32 v21, {c:#x}, v21")
    a("v_mov_b32 v24, v20"); a("v_mov_b32 v26, v21")
    allreduce("v_max_f32", [24, 26], [28, 29])
    a("v_sub_f32 v20, v20, v24"); a("v_sub_f32 v21, v21, v26")
    a("v_exp_f32 v25, v20"); a("v_exp_f32 v27, v21")
    a("v_and_b32 v1, 3, v0"); a("v_lshlrev_b32 v1, 6, v1"); a("v_and_b32 v4, 60, v0"); a("v_add_u32 v1, v1, v4")
    a(f"s_lshl_b32 {sT0}, {sH}, 9"); a(f"s_add_u32 {sT0}, {sT0}, {L_PT:#x}"); a(f"v_add_u32 v1, {sT0}, v1")
    a("v_cvt_pk_bf16_f32 v20, v25, v25"); a("v_cvt_pk_bf16_f32 v21, v27, v27")
    a("ds_write_b32 v1, v20"); a("ds_write_b32 v1, v21 offset:256")
    a(f"ds_write_b32 v6, v5 offset:{F_PRDY}")
    allreduce("v_add_f32", [25, 27], [28, 29])
    for r in range(24, 28): a(f"v_min_u32 v{r}, -2, v{r}")
    a(f"s_lshl_b32 {sT0}, {sWL}, 6"); a(f"s_lshl_b32 {sT1}, {sH}, 4"); a(f"s_add_u32 {sT0}, {sT0}, {sT1}"); a(f"s_add_u32 {sT0}, {sT0}, {WS_ST:#x}")
    a("s_mov_b64 exec, 1")
    store_local([f"buffer_store_dwordx4 v[24:27], v14, {WS}, {sT0} offen"])
    a("s_mov_b64 exec, -1")
    stamp(4)
    a(f"s_lshr_b32 {sT0}, {sWL}, 4"); a(f"s_lshl_b32 {sT0}, {sT0}, 10"); a(f"s_add_u32 {sT0}, {sT0}, {WS_ST:#x}")
    poll([f"buffer_load_dwordx4 v[32:35], v15, {WS}, {sT0} offen"], range(32, 36))
    a("v_mov_b32 v36, v32"); a("v_mov_b32 v37, v34")
    allreduce("v_max_f32", [36, 37], [28, 29])
    a("v_sub_f32 v32, v32, v36"); a("v_sub_f32 v34, v34, v37"); a("v_sub_f32 v24, v24, v36"); a("v_sub_f32 v26, v26, v37")
    a("v_exp_f32 v32, v32"); a("v_exp_f32 v34, v34"); a("v_exp_f32 v24, v24"); a("v_exp_f32 v26, v26")
    a("v_mul_f32 v33, v33, v32"); a("v_mul_f32 v35, v35, v34")
    allreduce("v_add_f32", [33, 35], [28, 29])
    a("v_rcp_f32 v33, v33"); a("v_rcp_f32 v35, v35")
    a(f"s_lshl_b32 {sT0}, {sH}, 3"); a(f"v_add_u32 v1, {sT0}, v7")
    a("v_mul_f32 v24, v24, v33"); a("v_mul_f32 v25, v26, v35")
    a(f"ds_write_b64 v1, v[24:25] offset:{F_FAC}")
    a(f"ds_write_b32 v6, v5 offset:{F_FRDY}")
    stamp(5)
    a("v_lshlrev_b32 v4, 7, v0"); a(f"s_lshl_b32 {sT0}, {sH}, 13"); a(f"s_add_u32 {sT0}, {sT0}, {WS_Q:#x}")
    a(f"s_mov_b32 {sCNT}, 0")
    lab("L_allpoll")
    a(f"buffer_load_dwordx2 v[24:25], v4, {WS}, {sT0} offen sc1")
    a(f"s_add_u32 {sCNT}, {sCNT}, 1"); a(f"s_cmp_gt_u32 {sCNT}, {SPIN_MEM}"); a("s_cbranch_scc1 L_exit")
    a("s_waitcnt vmcnt(0)")
    a("v_xor_b32 v24, v24, v2"); a("v_xor_b32 v25, v25, v3"); a("v_and_b32 v25, -16, v25"); a("v_or_b32 v24, v24, v25")
    a("v_cmp_ne_u32 vcc, 0, v24")
    a("s_and_b64 exec, exec, vcc"); a("s_cbranch_scc1 L_allpoll")
    a("s_mov_b64 exec, -1")
    stamp(6)
    srd(60, 24, 4096*448*2); srd(64, 28, 448*1792*2); srd(68, 30, 448*1792*2); srd(72, 32, 1792*448*2)
    srd(76, 34, 2*448*2); srd(52, 16, 2*448*2)
    a("v_add_u32 v11, s80, v11")
    a("v_mov_b32 v38, 0"); a("v_mov_b32 v39, 0"); a("v_mov_b32 v48, 0"); a("v_mov_b32 v49, 0"); a("v_mov_b32 v63, 0")
    a(f"s_cmp_lt_u32 {sI}, 28"); a("s_cbranch_scc0 L_nowo")
    a(f"s_lshl_b32 {sT0}, {sX}, 2"); a(f"s_add_u32 {sT0}, {sT0}, {sH}"); a(f"s_mul_i32 {sT0}, {sT0}, {128*896}")
    a(f"s_lshl_b32 {sT1}, {sI}, 5"); a(f"s_add_u32 {sT0}, {sT0}, {sT1}")
    a("s_mov_b32 m0, s80")
    for u in range(4):
        a(f"buffer_load_dwordx4 v9, {WO}, {sT0} offen lds")
        if u < 3: a(f"s_add_u32 {sT0}, {sT0}, {32*896}"); a("s_add_u32 m0, m0, 1024")
    a(f"s_cmp_eq_u32 {sX}, 0"); a("s_cbranch_scc0 L_nowo")
    a("v_bfe_u32 v1, v0, 3, 1"); a("v_mul_u32_u24 v1, 896, v1"); a("v_and_b32 v4, 7, v0"); a("v_lshl_add_u32 v1, v4, 2, v1")
    a(f"buffer_load_dword v39, v1, {X}, {sT1} offen")
    lab("L_nowo")
    a(f"s_mul_i32 s82, {sX}, 7"); a(f"s_add_u32 s82, s82, {sI}"); a("s_sub_u32 s82, s82, 25") if not stamps else None
    if stamps:
        L.pop(); L.pop()
        a(f"s_mul_i32 s83, {sX}, 7"); a(f"s_add_u32 s83, s83, {sI}"); a("s_sub_u32 s83, s83, 25")
    PHI = "s83" if stamps else "s82"
    a(f"s_cmp_ge_u32 {sI}, 25"); a("s_cbranch_scc0 L_noffnw")
    a(f"s_mul_i32 {sT0}, {sH}, {32*3584}"); a(f"s_lshl_b32 {sT1}, {PHI}, 6"); a(f"s_add_u32 {sT0}, {sT0}, {sT1}")
    a(f"s_add_u32 {sT1}, {sT0}, 32")
    a(f"s_add_u32 m0, s80, 4096")
    for u in range(4):
        for t, (m, so) in enumerate(((WG, sT0), (WG, sT1), (WU, sT0), (WU, sT1))):
            a(f"buffer_load_dwordx4 v10, {m}, {so} offen lds")
            a("s_add_u32 m0, m0, 1024")
        if u < 3: a(f"s_add_u32 {sT0}, {sT0}, {128*3584}"); a(f"s_add_u32 {sT1}, {sT1}, {128*3584}")
    a(f"s_mul_i32 {sT0}, {PHI}, {32*896}"); a(f"s_mul_i32 {sT1}, {sH}, 224"); a(f"s_add_u32 {sT0}, {sT0}, {sT1}")
    for t in range(7):
        a(f"buffer_load_dwordx4 v9, {WD}, {sT0} offen lds")
        if t < 6: a(f"s_add_u32 {sT0}, {sT0}, 32"); a("s_add_u32 m0, m0, 1024")
    a("s_waitcnt vmcnt(0)")
    for k in range(23):
        a(f"ds_read_b64_tr_b16 {vr(80+4*k,2)}, v11 offset:{4096+1024*k}")
        a(f"ds_read_b64_tr_b16 {vr(82+4*k,2)}, v11 offset:{4096+1024*k+128}")
        if k % 6 == 5: a("s_waitcnt lgkmcnt(0)")
    for r in range(4): a(f"v_mov_b32 v{40+r}, 0x3f803f80")
    a("s_waitcnt lgkmcnt(0)")
    for u in range(4):
        for t in range(4):
            a(f"v_mfma_f32_16x16x32_bf16 {vr(20+4*t,4)}, v[40:43], {vr(80+16*u+4*t,4)}, " + ("0" if u == 0 else vr(20+4*t,4)))
    a("v_bfe_u32 v1, v0, 4, 1"); a("v_cmp_eq_u32 vcc, 1, v1")
    a("v_cndmask_b32 v46, v20, v24, vcc"); a("v_cndmask_b32 v47, v28, v32, vcc")
    a("v_and_b32 v1, 7, v0"); a("v_mul_u32_u24 v48, 3584, v1"); a("v_bfe_u32 v1, v0, 3, 1"); a("v_lshl_add_u32 v48, v1, 5, v48")
    a("v_lshrrev_b32 v1, 5, v0"); a("v_lshl_add_u32 v48, v1, 7, v48"); a("v_bfe_u32 v1, v0, 4, 1"); a("v_lshl_add_u32 v48, v1, 4, v48")
    a(f"s_cmp_ge_u32 {sH}, 2"); a(f"s_cselect_b32 {sT0}, 0x10000000, 0"); a(f"v_add_u32 v49, {sT0}, v48")
    a(f"s_lshl_b32 {sT0}, {sH}, 10"); a(f"s_add_u32 {sT0}, {sT0}, {L_R3:#x}"); a(f"v_add_u32 v50, {sT0}, v15")
    a(f"v_add_u32 v51, {L_R3:#x}, v15")
    a(f"s_lshl_b32 {sT0}, {sH}, 8"); a(f"s_add_u32 {sT0}, {sT0}, {L_R3S:#x}"); a("v_lshlrev_b32 v1, 2, v0"); a(f"v_add_u32 v52, {sT0}, v1")
    a("v_lshrrev_b32 v1, 5, v0"); a("v_mul_u32_u24 v1, 160, v1"); a(f"v_add_u32 v53, {L_R3S:#x}, v1")
    a(f"s_lshl_b32 {sT0}, {sH}, 7"); a(f"s_add_u32 {sT0}, {sT0}, {L_HH:#x}"); a("v_lshlrev_b32 v1, 1, v0"); a(f"v_add_u32 v54, {sT0}, v1")
    a("v_and_b32 v1, 1, v0"); a("v_lshlrev_b32 v1, 6, v1"); a("v_lshl_add_u32 v1, v12, 4, v1"); a(f"v_add_u32 v1, {sT0}, v1")
    a("v_lshrrev_b32 v4, 1, v13"); a(f"v_mov_b32 v55, {L_FL + F_ZERO:#x}")
    for t in range(7):
        a(f"v_cmp_eq_u32 vcc, {t}, v4"); a(f"v_cndmask_b32 v{56+t}, v55, v1, vcc")
    a("v_and_b32 v1, 1, v0"); a("v_mul_u32_u24 v1, 1792, v1"); a("v_lshl_add_u32 v1, v4, 6, v1"); a("v_lshl_add_u32 v63, v12, 4, v1")
    lab("L_noffnw")
    a(f"s_cmp_lt_u32 {sI}, 28"); a("s_cbranch_scc0 L_nowo2")
    a("s_waitcnt vmcnt(0)")
    for k in range(4):
        a(f"ds_read_b64_tr_b16 {vr(64+4*k,2)}, v11 offset:{1024*k}")
        a(f"ds_read_b64_tr_b16 {vr(66+4*k,2)}, v11 offset:{1024*k+128}")
    a("v_lshlrev_b32 v38, 16, v39"); a("v_and_b32 v39, 0xffff0000, v39")
    a("v_lshlrev_b32 v1, 4, v12"); a("v_lshl_add_u32 v4, v13, 10, v1")
    a(f"s_lshl_b32 {sT0}, {sX}, 15"); a(f"s_lshl_b32 {sT1}, {sH}, 8"); a(f"s_add_u32 {sT0}, {sT0}, {sT1}"); a(f"s_add_u32 {sT0}, {sT0}, {WS_O:#x}")
    a(f"s_add_u32 {sT1}, {sT0}, 16384")
    a(f"s_lshl_b32 {sT2}, {sH}, 8"); a(f"s_add_u32 {sT2}, {sT2}, {L_RED2:#x}"); a("v_lshlrev_b32 v1, 2, v0"); a(f"v_add_u32 v36, {sT2}, v1")
    a("v_lshlrev_b32 v37, 3, v13"); a(f"v_add_u32 v37, {L_RED2:#x}, v37")
    a("s_waitcnt lgkmcnt(0)")
    stamp(7)
    poll([f"buffer_load_dwordx4 {vr(176+16*bb+4*u,4)}, v4, {WS}, {(sT0, sT1)[bb]} offen offset:{64*u}" for bb in range(2) for u in range(4)],
         range(176, 208))
    stamp(8)
    for u in range(4):
        for bb in range(2):
            a(f"v_mfma_f32_16x16x32_bf16 {vr(20+4*bb,4)}, {vr(176+16*bb+4*u,4)}, {vr(64+4*u,4)}, " + ("0" if u == 0 else vr(20+4*bb,4)))
    a("v_add_f32 v20, v20, v21"); a("v_add_f32 v22, v22, v23"); a("v_add_f32 v24, v24, v25"); a("v_add_f32 v26, v26, v27")
    a("v_add_f32 v20, v20, v22"); a("v_add_f32 v24, v24, v26")
    a("v_permlane16_swap_b32 v20, v24"); a("v_add_f32 v20, v20, v24")
    a("ds_write_b32 v36, v20")
    a("s_waitcnt lgkmcnt(0)")
    lab("L_nowo2")
    a("s_barrier")
    a(f"s_cmp_lt_u32 {sI}, 28"); a("s_cbranch_scc0 L_ffn")
    a(f"s_cmp_eq_u32 {sH}, 0"); a("s_cbranch_scc0 L_nop")
    for k in range(8): a(f"ds_read_b64 {vr(20+2*k,2)}, v37 offset:{128*k}")
    a(f"s_mul_i32 {sT0}, {sX}, 28"); a(f"s_add_u32 {sT0}, {sT0}, {sI}"); a(f"s_lshl_b32 {sT0}, {sT0}, 7"); a(f"s_add_u32 {sT0}, {sT0}, {WS_P:#x}")
    a("v_lshlrev_b32 v1, 2, v0")
    a("s_waitcnt lgkmcnt(0)")
    for st in (2, 4, 8):
        for k in range(0, 16, 2 * st): a(f"v_pk_add_f32 {vr(20+k,2)}, {vr(20+k,2)}, {vr(20+k+st,2)}")
    a("v_pk_add_f32 v[20:21], v[20:21], v[38:39]")
    a("v_cvt_pk_bf16_f32 v20, v20, v21"); a("v_min_u32 v20, -2, v20")
    a("s_mov_b64 exec, 0xffff")
    a(f"buffer_store_dword v20, v1, {WS}, {sT0} offen sc1")
    a("s_mov_b64 exec, -1")
    stamp(9)
    lab("L_nop")
    a(f"s_cmp_ge_u32 {sI}, 25"); a("s_cbranch_scc0 L_final")
    lab("L_ffn")
    a(f"s_lshl_b32 {sT0}, {sH}, 8"); a(f"s_add_u32 {sT0}, {sT0}, {WS_P:#x}")
    a(f"s_mul_i32 {sT1}, {PHI}, 3584"); a(f"s_mul_i32 {sT2}, {sH}, 448"); a(f"s_add_u32 {sT1}, {sT1}, {sT2}"); a(f"s_add_u32 {sT1}, {sT1}, {WS_F:#x}")
    poll([f"buffer_load_dwordx4 {vr(176+4*u,4)}, v{49 if u == 3 else 48}, {WS}, {sT0} offen offset:{1024*u}" for u in range(4)], range(176, 192))
    stamp(10)
    for u in range(4):
        A = vr(176+4*u, 4)
        a(f"v_mfma_f32_16x16x32_bf16 v[192:195], {A}, {A}, " + ("0" if u == 0 else "v[192:195]"))
        a(f"v_mfma_f32_16x16x32_bf16 v[196:199], {A}, v[40:43], " + ("0" if u == 0 else "v[196:199]"))
    for u in range(4):
        A = vr(176+4*u, 4)
        for t in range(4):
            a(f"v_mfma_f32_16x16x32_bf16 {vr(20+4*t,4)}, {A}, {vr(80+16*u+4*t,4)}, " + ("0" if u == 0 else vr(20+4*t,4)))
        if u == 2:
            a("v_add_f32 v192, v192, v193"); a("v_add_f32 v194, v194, v195"); a("v_add_f32 v196, v196, v197"); a("v_add_f32 v198, v198, v199")
            a("v_add_f32 v192, v192, v194"); a("v_add_f32 v196, v196, v198")
    a("v_add_f32_dpp v192, v192, v192 quad_perm:[1,0,3,2] row_mask:0xf bank_mask:0xf")
    a("v_add_f32_dpp v192, v192, v192 quad_perm:[2,3,0,1] row_mask:0xf bank_mask:0xf")
    a("v_add_f32_dpp v192, v192, v192 row_half_mirror row_mask:0xf bank_mask:0xf")
    a("v_permlane16_swap_b32 v192, v196"); a("v_add_f32 v192, v192, v196")
    a("ds_write_b32 v52, v192")
    for t in range(4):
        b0 = 20 + 4 * t
        a(f"v_add_f32 v{b0}, v{b0}, v{b0+1}"); a(f"v_add_f32 v{b0+2}, v{b0+2}, v{b0+3}")
    for t in range(4):
        b0 = 20 + 4 * t
        a(f"v_add_f32 v{b0}, v{b0}, v{b0+2}")
    a("v_permlane16_swap_b32 v20, v24"); a("v_permlane16_swap_b32 v28, v32")
    a("v_add_f32 v44, v20, v24"); a("v_add_f32 v45, v28, v32")
    a("ds_write_b128 v50, v[44:47]")
    a("s_waitcnt lgkmcnt(0)")
    a("s_barrier")
    for w in range(4): a(f"ds_read2_b32 {vr(192+2*w,2)}, v53 offset0:{64*w} offset1:{64*w+16}")
    for w in range(4): a(f"ds_read_b128 {vr(20+4*w,4)}, v51 offset:{1024*w}")
    a("s_waitcnt lgkmcnt(4)")
    a("v_pk_add_f32 v[192:193], v[192:193], v[194:195]"); a("v_pk_add_f32 v[196:197], v[196:197], v[198:199]")
    a("v_pk_add_f32 v[192:193], v[192:193], v[196:197]")
    a(f"v_mul_f32 v193, {f2u(1/448):#x}, v193"); a(f"v_mul_f32 v192, {f2u(1/448):#x}, v192")
    a("v_fma_f32 v192, -v193, v193, v192"); a("v_max_f32 v192, 0, v192")
    a(f"v_add_f32 v192, {f2u(1e-5):#x}, v192"); a("v_rcp_f32 v192, v192")
    a("s_waitcnt lgkmcnt(0)")
    for j in (0, 2):
        a(f"v_pk_add_f32 {vr(20+j,2)}, {vr(20+j,2)}, {vr(24+j,2)}"); a(f"v_pk_add_f32 {vr(28+j,2)}, {vr(28+j,2)}, {vr(32+j,2)}")
    for j in (0, 2): a(f"v_pk_add_f32 {vr(20+j,2)}, {vr(20+j,2)}, {vr(28+j,2)}")
    a("v_fma_f32 v20, -v193, v22, v20"); a("v_fma_f32 v21, -v193, v23, v21")
    a("v_mul_f32 v20, v20, v192"); a("v_mul_f32 v20, v20, v21")
    a("v_cvt_pk_bf16_f32 v20, v20, v20")
    a("ds_write_b16 v54, v20")
    for t in range(7): a(f"ds_read_b128 {vr(176+4*t,4)}, v{56+t}")
    for t in range(7):
        a(f"s_waitcnt lgkmcnt({6-t})")
        a(f"v_mfma_f32_16x16x32_bf16 v[20:23], {vr(144+4*t,4)}, {vr(176+4*t,4)}, " + ("0" if t == 0 else "v[20:23]"))
    a("s_mov_b32 exec_lo, 0x3fff3fff"); a("s_mov_b32 exec_hi, 0x3fff3fff")
    for j in range(4): a(f"v_min_u32 v{20+j}, -2, v{20+j}")
    a(f"buffer_store_dwordx4 v[20:23], v63, {WS}, {sT1} offen sc1")
    a("s_mov_b64 exec, -1")
    stamp(11)
    a("s_branch L_exit")
    lab("L_final")
    a(f"s_cmp_eq_u32 {sH}, 1"); a("s_cbranch_scc0 L_exit")
    a(f"s_cmp_lt_u32 {sI}, 4"); a("s_cbranch_scc0 L_exit")
    a(f"s_cmp_lt_u32 {sX}, 7"); a("s_cbranch_scc0 L_exit")
    a(f"s_lshl_b32 {sT0}, {sX}, 2"); a(f"s_add_u32 s80, {sT0}, {sI}")
    a(f"s_cmp_ge_u32 s80, 14"); a(f"s_cselect_b32 {sT1}, 1, 0")
    a(f"s_mul_i32 {sT2}, {sT1}, 14"); a(f"s_sub_u32 {sT2}, s80, {sT2}")
    a("v_lshrrev_b32 v1, 3, v0"); a("v_mul_u32_u24 v8, 3584, v1"); a("v_and_b32 v4, 7, v0")
    a("v_lshl_add_u32 v9, v4, 4, v8")
    a("v_bfe_u32 v1, v0, 2, 1"); a("v_lshl_add_u32 v8, v1, 7, v8"); a("v_and_b32 v1, 3, v0"); a("v_lshl_add_u32 v8, v1, 3, v8")
    a("v_lshlrev_b32 v10, 3, v4"); a("v_lshl_add_u32 v10, v12, 1, v10")
    a(f"s_lshl_b32 {sT0}, {sT2}, 8"); a(f"s_lshl_b32 {sT3}, {sT1}, 5"); a(f"s_add_u32 {sT0}, {sT0}, {sT3}"); a(f"s_add_u32 {sT0}, {sT0}, {WS_P:#x}")
    a(f"s_lshl_b32 s16, s80, 7"); a(f"s_add_u32 s16, s16, {WS_F:#x}")
    for u in range(1, 7): a(f"s_add_u32 s{16+u}, s16, {8*3584*u}")
    a(f"s_lshl_b32 s23, s80, 6")
    a(f"buffer_load_ushort v11, v10, {OUT}, s23 offen")
    poll([f"buffer_load_dwordx2 v[24:25], v8, {WS}, {sT0} offen"], [24, 25])
    a("v_lshlrev_b32 v20, 16, v24"); a("v_and_b32 v21, 0xffff0000, v24"); a("v_lshlrev_b32 v22, 16, v25"); a("v_and_b32 v23, 0xffff0000, v25")
    stamp(10)
    poll([f"buffer_load_dwordx4 {vr(24+4*u,4)}, v9, {WS}, s{16+u} offen" for u in range(7)], range(24, 52))
    stamp(11)
    for st in (4, 8, 16):
        for k in range(0, 32, 2 * st):
            for j in (0, 2): a(f"v_pk_add_f32 {vr(20+k+j,2)}, {vr(20+k+j,2)}, {vr(20+k+st+j,2)}")
    a("v_permlane32_swap_b32 v20, v22"); a("v_permlane32_swap_b32 v21, v23")
    a("v_add_f32 v20, v20, v22"); a("v_add_f32 v21, v21, v23")
    a("v_permlane16_swap_b32 v20, v21"); a("v_add_f32 v20, v20, v21")
    a("v_add_f32_dpp v20, v20, v20 row_ror:8 row_mask:0xf bank_mask:0xf")
    if bias: a(f"v_add_f32 v20, {f2u(bias/1000):#x}, v20")
    a("v_cvt_pk_bf16_f32 v20, v20, v20")
    a("s_mov_b32 exec_lo, 0x00ff00ff"); a("s_mov_b32 exec_hi, 0x00ff00ff")
    a(f"buffer_store_short v20, v10, {OUT}, s23 offen")
    a("s_mov_b64 exec, 1")
    a("s_cmp_eq_u32 s80, 0"); a("s_cbranch_scc0 L_noep")
    a(f"buffer_store_dwordx2 v[2:3], v14, {WS}, 0 offen sc1")
    lab("L_noep")
    a("s_mov_b64 exec, -1")
    stamp(12)
    lab("L_exit")
    if padto:
        a("s_cmp_eq_u32 s2, 0"); a("s_cbranch_scc0 L_nopad")
        lab("L_padl")
        a("s_memrealtime s[98:99]"); a("s_waitcnt lgkmcnt(0)"); a("s_sub_u32 s98, s98, s96")
        a(f"s_cmp_eq_u32 {sWAVE}, 5"); a("s_cbranch_scc0 L_nopad")
        a(f"s_cmp_lt_u32 s98, {padto}"); a("s_cbranch_scc1 L_padl")
        lab("L_nopad")
    if stamps:
        a("s_mov_b64 exec, -1")
        a("s_waitcnt vmcnt(0) lgkmcnt(0)")
        a("s_memrealtime s[100:101]"); a("s_waitcnt lgkmcnt(0)"); a("s_mov_b32 s98, s100"); a("s_mov_b32 s99, s82")
        for k in range(16): a(f"v_mov_b32 v{20+k}, s{84+k}")
        a(f"s_lshl_b32 {sT0}, s2, 3"); a(f"s_add_u32 {sT0}, {sT0}, {sWAVE}"); a(f"s_lshl_b32 {sT0}, {sT0}, 6"); a(f"s_add_u32 {sT0}, {sT0}, {WS_STAMP:#x}")
        a("v_mov_b32 v1, 0"); a("s_mov_b64 exec, 1")
        for k in range(4): a(f"buffer_store_dwordx4 {vr(20+4*k,4)}, v1, {WS}, {sT0} offen offset:{16*k}")
    lab("L_end")
    a("s_endpgm")
    if not kvnt: L = [x.replace(" nt", "") for x in L]
    body = pad(L)
    body += ['.section .rodata,"a"', ".p2align 6", f".amdhsa_kernel {NAME}_kernel",
             "  .amdhsa_next_free_vgpr 224", "  .amdhsa_next_free_sgpr 102", "  .amdhsa_accum_offset 224",
             "  .amdhsa_group_segment_fixed_size 0", "  .amdhsa_kernarg_size 96", "  .amdhsa_user_sgpr_count 2",
             "  .amdhsa_user_sgpr_kernarg_segment_ptr 1", "  .amdhsa_system_sgpr_workgroup_id_x 1",
             "  .amdhsa_float_denorm_mode_32 3", ".end_amdhsa_kernel"]
    return "\n".join(body) + "\n"

if __name__ == "__main__":
    kw = {}
    for arg in sys.argv[2:]:
        k, v = arg.split("="); kw[k] = int(v)
    open(sys.argv[1], "w").write(gen(**kw))
```

```python
import sys, struct
from asmlib import pad
NAME = "sequential_preLN__sliding_block_cached__glu_gated_bilinear__decode"

def f2u(x): return struct.unpack("<I", struct.pack("<f", x))[0]

WS_E, WS_ST, WS_P, WS_Q, WS_O, WS_F = 0x0, 0x4000, 0x8000, 0x20000, 0x40000, 0x80000
WS_STAMP = 0x100000
WS_SIZE = 0x200000
L_WQ = 0x20000
L_RED = 0x20000
L_RED2, L_R3, L_R3S, L_HH = 0x22000, 0x22400, 0x23400, 0x23800
L_X, L_QS, L_PT, L_FL = 0x24000, 0x24E00, 0x25F00, 0x26700
LDS_SIZE = 0x26800
QP = 528
F_QRDY, F_CNT, F_PROG, F_PRDY, F_M, F_ZERO = 0, 4, 16, 32, 64, 112
SPIN_LDS, SPIN_MEM = 1 << 21, 1 << 18
N_WO, FFN0, FIN0 = 14, 14, 21

def gen(window=6, hwin=8, stamps=False, force_sc1=False, rotmul=1, pwg=-1, pwave=0, pst=0, padto=0, wnt=1,
        qtrig=3, wtrig=32, ftrig=32, ptrig=32, pf=1, hprio=0, fwin=24,
        nowq=0, noq=0, noclr=0, norole=0, vwin=0, strig=20, pa=-1, pb=-1):
    L = []
    def a(s): L.append("    " + s)
    def lab(s): L.append(s + ":")
    uid = [0]
    def new(p): uid[0] += 1; return f"L_{p}{uid[0]}"
    sWAVE, sX, sI, sB, sS, sWL, sH = "s3", "s4", "s5", "s6", "s7", "s8", "s9"
    sT0, sT1, sT2, sT3, sCNT, sSAME = "s10", "s11", "s12", "s13", "s14", "s15"
    K, V, WS, X, WQ, WO, WG, WU, WD, OUT = (f"s[{n}:{n+3}]" for n in range(40, 80, 4))
    PHI = "s83"
    NT = " nt" if wnt else ""
    vw = vwin or window
    def srd(n, lo, size):
        a(f"s_mov_b32 s{n}, s{lo}"); a(f"s_mov_b32 s{n+1}, s{lo+1}")
        a(f"s_mov_b32 s{n+2}, {size:#x}"); a(f"s_mov_b32 s{n+3}, 0x20000")
    def stamp(k):
        if stamps:
            a("s_memrealtime s[100:101]"); a("s_waitcnt lgkmcnt(0)"); a(f"s_mov_b32 s{84+k}, s100")
    def vr(b, n): return f"v[{b}:{b+n-1}]"
    def mfma(d, x, y, first): a(f"v_mfma_f32_16x16x32_bf16 {vr(d,4)}, {vr(x,4)}, {vr(y,4)}, " + ("0" if first else vr(d,4)))
    def lds_spin(vaddr, off, dst=sT0, four=None, ge=1):
        l, d = new("spin"), new("got")
        a(f"s_mov_b32 {sCNT}, 0")
        lab(l)
        if four is None: a(f"ds_read_b32 v1, {vaddr} offset:{off}")
        else: a(f"ds_read_b128 {vr(four,4)}, {vaddr} offset:{off}")
        a(f"s_add_u32 {sCNT}, {sCNT}, 1")
        a("s_waitcnt lgkmcnt(0)")
        if four is not None:
            a(f"v_min3_u32 v1, v{four}, v{four+1}, v{four+2}"); a(f"v_min_u32 v1, v1, v{four+3}")
        a(f"v_readfirstlane_b32 {dst}, v1")
        a(f"s_cmp_ge_u32 {dst}, {ge}"); a(f"s_cbranch_scc1 {d}")
        a(f"s_cmp_gt_u32 {sCNT}, {SPIN_LDS}"); a("s_cbranch_scc1 L_exit")
        a("s_sleep 1"); a(f"s_branch {l}")
        lab(d)
    def dpp(op, d, s, ctl): a(f"{op}_dpp v{d}, v{s}, v{s} {ctl} row_mask:0xf bank_mask:0xf")
    def allreduce(op, regs, tmps, swaps=("v_permlane16_swap_b32", "v_permlane32_swap_b32"), rors=(8, 4, 2, 1)):
        for sh in rors:
            for r in regs: dpp(op, r, r, f"row_ror:{sh}")
        for sw in swaps:
            for r, t in zip(regs, tmps): a(f"v_mov_b32 v{t}, v{r}")
            for r, t in zip(regs, tmps): a(f"{sw} v{r}, v{t}")
            for r, t in zip(regs, tmps): a(f"{op} v{r}, v{r}, v{t}")
    def store_local(text):
        if force_sc1:
            for t in text: a(t + " sc1")
            return
        l1, l2 = new("far"), new("st")
        a(f"s_cmp_eq_u32 {sSAME}, 2"); a(f"s_cbranch_scc0 {l1}")
        for t in text: a(t)
        a(f"s_branch {l2}")
        lab(l1)
        for t in text: a(t + " sc1")
        lab(l2)
    def maxchain(dst, regs):
        regs = list(regs)
        if len(regs) == 2:
            a(f"v_max_u32 v{dst}, v{regs[0]}, v{regs[1]}"); return
        a(f"v_max3_u32 v{dst}, v{regs[0]}, v{regs[1]}, v{regs[2]}")
        rest = regs[3:]
        while rest:
            if len(rest) >= 2:
                a(f"v_max3_u32 v{dst}, v{dst}, v{rest[0]}, v{rest[1]}"); rest = rest[2:]
            else:
                a(f"v_max_u32 v{dst}, v{dst}, v{rest[0]}"); rest = []
    def poll(loads, regs, tmp=1):
        l = new("poll")
        a(f"s_mov_b32 {sCNT}, 0")
        lab(l)
        for t in loads: a(t + " sc1")
        a(f"s_add_u32 {sCNT}, {sCNT}, 1")
        a(f"s_cmp_gt_u32 {sCNT}, {SPIN_MEM}"); a("s_cbranch_scc1 L_exit")
        a("s_waitcnt vmcnt(0)")
        maxchain(tmp, regs)
        a(f"v_cmp_eq_u32 vcc, -1, v{tmp}")
        a("s_and_b64 exec, exec, vcc")
        a(f"s_cbranch_scc1 {l}")
        a("s_mov_b64 exec, -1")
    def tagpoll(voff):
        l = new("tag")
        a(f"s_mov_b32 {sCNT}, 0"); a(f"s_mov_b32 {sT0}, {WS_Q:#x}")
        lab(l)
        a(f"buffer_load_dwordx2 v[24:25], {voff}, {WS}, {sT0} offen sc1")
        a(f"s_add_u32 {sCNT}, {sCNT}, 1"); a(f"s_cmp_gt_u32 {sCNT}, {SPIN_MEM}"); a("s_cbranch_scc1 L_exit")
        a("s_waitcnt vmcnt(0)")
        a("v_xor_b32 v24, v24, v2"); a("v_xor_b32 v25, v25, v3"); a("v_and_or_b32 v24, v25, -16, v24")
        a("v_cmp_ne_u32 vcc, 0, v24")
        a("s_and_b64 exec, exec, vcc"); a(f"s_cbranch_scc1 {l}")
        a("s_mov_b64 exec, -1")
    def dma(voff, srd_, soff, pol="", win=None):
        a(f"buffer_load_dwordx4 {voff}, {srd_}, {soff} offen{pol} lds")
        a("s_add_u32 m0, m0, 1024")
        a(f"s_waitcnt vmcnt({(win or hwin)-1})")

    L.append(f"; @launch grid=(256,1,1) block=(512,1,1) lds={LDS_SIZE}")
    L.append('.amdgcn_target "amdgcn-amd-amdhsa--gfx950"')
    L.append(".text"); L.append(f".globl {NAME}_kernel"); L.append(".p2align 8")
    L.append(f".type {NAME}_kernel,@function"); lab(f"{NAME}_kernel")
    a("s_cmp_ge_u32 s2, 256"); a("s_cbranch_scc1 L_end")
    a("s_load_dwordx16 s[16:31], s[0:1], 0")
    a("s_load_dwordx8 s[32:39], s[0:1], 64")
    if stamps or padto:
        for k in range(16): a(f"s_mov_b32 s{84+k}, 0")
        a("s_memrealtime s[82:83]")
    a("v_lshrrev_b32 v1, 6, v0")
    a("v_and_b32 v0, 63, v0")
    a(f"v_readfirstlane_b32 {sWAVE}, v1")
    a("v_and_b32 v2, 31, v0"); a(f"v_mov_b32 v7, {L_FL:#x}"); a("v_lshl_add_u32 v3, v2, 2, v7"); a("v_mov_b32 v4, 0")
    a("ds_write_b32 v3, v4")
    a(f"s_and_b32 {sX}, s2, 7"); a(f"s_lshr_b32 {sI}, s2, 3")
    a(f"s_lshr_b32 {sB}, {sI}, 4"); a(f"s_and_b32 {sS}, {sI}, 15")
    a(f"s_lshl_b32 {sWL}, {sX}, 5"); a(f"s_add_u32 {sWL}, {sWL}, {sI}")
    a(f"s_and_b32 {sH}, {sWAVE}, 3")
    a(f"v_lshl_add_u32 v6, {sH}, 2, v7")
    a("v_mov_b32 v5, 1")
    a(f"s_cmp_ge_u32 {sWAVE}, 4"); a("s_cbranch_scc1 L_helper")

    a("v_lshrrev_b32 v1, 3, v0"); a("v_and_b32 v4, 7, v0"); a("v_lshlrev_b32 v4, 4, v4"); a("v_lshl_add_u32 v16, v1, 13, v4")
    a(f"s_lshr_b32 {sT0}, {sI}, 3"); a(f"s_lshl_b32 {sT1}, {sH}, 2"); a(f"s_add_u32 {sT0}, {sT0}, {sT1}"); a(f"s_lshl_b32 {sT0}, {sT0}, 18")
    a(f"s_and_b32 {sT1}, {sI}, 7"); a(f"s_lshl_b32 {sT1}, {sT1}, 7"); a(f"s_add_u32 {sT0}, {sT0}, {sT1}")
    a(f"s_lshl_b32 {sT1}, {sX}, 10"); a(f"s_add_u32 {sT3}, {sT0}, {sT1}")
    a(f"s_lshl_b32 {sT1}, {sH}, 12"); a(f"s_add_u32 m0, {sT1}, {L_WQ:#x}")
    a("v_lshrrev_b32 v1, 5, v0"); a("v_xor_b32 v2, v2, v1"); a("v_lshlrev_b32 v2, 4, v2")
    a("v_lshl_add_u32 v8, v1, 9, v2")
    for k in range(1, 8): a(f"v_xor_b32 v{8+k}, {32*k}, v8")
    a(f"s_lshl_b32 {sT0}, {sB}, 3"); a(f"s_add_u32 {sT0}, {sT0}, {sX}"); a(f"s_lshl_b32 {sT0}, {sT0}, 24")
    a(f"s_lshl_b32 {sT1}, {sS}, 17"); a(f"s_add_u32 {sT0}, {sT0}, {sT1}")
    a(f"s_lshl_b32 {sT1}, {sH}, 11"); a(f"s_add_u32 {sT0}, {sT0}, {sT1}")
    a(f"s_add_u32 s80, {sT0}, 0xE00000")
    a(f"s_mul_i32 s81, {sI}, {8192*rotmul}"); a("s_and_b32 s81, s81, 0x1ffff")
    a("s_waitcnt lgkmcnt(0)")
    srd(56, 22, 448*4096*2)
    for k in range(0 if nowq else 4):
        a(f"buffer_load_dwordx4 v16, {WQ}, {sT3} offen{NT} lds")
        if k < 3: a(f"s_add_u32 {sT3}, {sT3}, 65536"); a("s_add_u32 m0, m0, 1024")
    srd(40, 18, 0x10000000)
    a(f"s_lshl_b32 m0, {sH}, 15")
    a(f"s_mov_b32 {sT2}, 0"); a(f"v_mov_b32 v17, {0 if window <= 9 else -1}")
    a("s_barrier")
    lab("L_kloop")
    n = 0
    for rr in range(4):
        a(f"s_add_u32 {sT0}, s80, s81")
        for h in range(2):
            a(f"buffer_load_dwordx4 v{8+2*rr+h}, {K}, {sT0} offen offset:{1024*h} nt lds")
            if h:
                a("s_add_u32 s81, s81, 8192"); a("s_and_b32 s81, s81, 0x1ffff"); a("s_add_u32 m0, m0, 2048")
            a(f"s_waitcnt vmcnt({window-1})")
            n += 1
            if n == min(window - 1, 8):
                a("v_add_u32 v17, 1, v17"); a(f"ds_write_b32 v6, v17 offset:{F_PROG}")
    if stamps:
        a("s_mov_b32 s90, s91"); a("s_mov_b32 s91, s92"); a("s_mov_b32 s92, s93"); stamp(9)
    a(f"s_add_u32 {sT2}, {sT2}, 1"); a(f"s_cmp_lt_u32 {sT2}, 4"); a("s_cbranch_scc1 L_kloop")
    srd(44, 20, 0x10000000); srd(48, 38, WS_SIZE)
    a("v_lshrrev_b32 v1, 4, v0"); a("v_and_b32 v2, 15, v0"); a("v_lshlrev_b32 v2, 4, v2"); a("v_lshl_add_u32 v16, v1, 9, v2")
    stamp(0)
    n = 0
    for r in range(16):
        a(f"s_add_u32 {sT0}, s80, s81")
        for h in range(2):
            a(f"buffer_load_dwordx4 {vr(64+8*r+4*h,4)}, v16, {V}, {sT0} offen offset:{256*h} nt")
            if h == 1 and r < 15:
                a("s_add_u32 s81, s81, 8192"); a("s_and_b32 s81, s81, 0x1ffff")
            n += 1
            if n < 32: a(f"s_waitcnt vmcnt({(window if n < window else vw)-1})")
            if n in (window - 1, wtrig, ftrig, ptrig, strig, 32):
                a(f"v_mov_b32 v9, {8+n}"); a(f"ds_write_b32 v6, v9 offset:{F_PROG}")
            if n == window - 1: stamp(1)
            if n == window + 1:
                a("v_and_b32 v1, 1, v0"); a("v_lshlrev_b32 v1, 4, v1"); a("v_mov_b32 v2, 0xffff"); a("v_lshlrev_b32 v2, v1, v2")
                a("v_bfe_u32 v1, v0, 1, 2")
                for q in range(4):
                    a(f"v_cmp_eq_u32 vcc, {q}, v1"); a(f"v_cndmask_b32 v{20+q}, 0, v2, vcc")
                a("v_bfe_u32 v1, v0, 3, 1"); a("v_lshlrev_b32 v1, 8, v1"); a("v_lshrrev_b32 v2, 4, v0"); a("v_lshl_add_u32 v1, v2, 6, v1")
                a(f"s_lshl_b32 {sT1}, {sH}, 9"); a(f"s_add_u32 {sT1}, {sT1}, {L_PT:#x}"); a(f"v_add_u32 v17, {sT1}, v1")
                a(f"s_lshl_b32 {sT1}, {sH}, 11"); a(f"s_add_u32 {sT1}, {sT1}, {L_RED:#x}")
                a("v_lshlrev_b32 v1, 4, v0"); a(f"v_add_u32 v18, {sT1}, v1")
                a("v_and_b32 v1, 47, v0"); a("v_lshlrev_b32 v1, 4, v1"); a("v_bfe_u32 v2, v0, 4, 1"); a("v_lshl_add_u32 v1, v2, 10, v1")
                a(f"v_add_u32 v19, {L_RED:#x}, v1")
                a("v_lshrrev_b32 v1, 5, v0"); a("v_lshl_add_u32 v4, v1, 4, v7"); a(f"v_lshl_add_u32 v8, {sH}, 2, v4")
                a("v_lshlrev_b32 v3, 8, v0")
                a(f"s_lshr_b32 {sT3}, {sWL}, 4"); a(f"s_lshl_b32 {sT3}, {sT3}, 14"); a(f"s_lshl_b32 {sT1}, {sS}, 4")
                a(f"s_add_u32 {sT3}, {sT3}, {sT1}"); a(f"s_add_u32 {sT3}, {sT3}, {WS_O:#x}")
    stamp(2)
    lds_spin("v7", F_PRDY, four=24)
    for j in range(4): a(f"ds_read_b128 {vr(24+4*j,4)}, v17 offset:{16*j}")
    a(f"ds_read_b128 v[56:59], v4 offset:{F_M}"); a(f"ds_read_b32 v60, v8 offset:{F_M}")
    a(f"ds_read_b32 v2, v7 offset:{F_QRDY}")
    a("s_waitcnt lgkmcnt(0)")
    a(f"v_readfirstlane_b32 {sSAME}, v2")
    stamp(3)
    def amask(r):
        for j in range(4): a(f"v_and_b32 v{40+4*(r&1)+j}, v{24+r}, v{20+j}")
    amask(0)
    a("v_max3_f32 v56, v56, v57, v58"); a("v_max_f32 v56, v56, v59"); a("v_sub_f32 v56, v60, v56"); a("v_exp_f32 v56, v56")
    for r in range(16):
        if r < 15: amask(r + 1)
        if 30 - 2 * r < vw: a(f"s_waitcnt vmcnt({30-2*r})")
        for h in range(2): mfma(48 + 4 * h, 40 + 4 * (r & 1), 64 + 8 * r + 4 * h, r == 0)
    stamp(4)
    for j in range(4): a(f"v_mul_f32 v{48+j}, v{48+j}, v56")
    a(f"ds_write_b128 v18, {vr(48,4)}")
    for j in range(4, 8): a(f"v_mul_f32 v{48+j}, v{48+j}, v56")
    a(f"ds_write_b128 v18, {vr(52,4)} offset:1024")
    a("s_mov_b64 exec, 1")
    a(f"ds_add_rtn_u32 v1, v7, v5 offset:{F_CNT}")
    a("s_mov_b64 exec, -1")
    a("s_waitcnt lgkmcnt(0)")
    a(f"v_readfirstlane_b32 {sT0}, v1")
    a(f"s_cmp_eq_u32 {sT0}, 3"); a("s_cbranch_scc0 L_exit")
    for z in range(2):
        for w in range(4): a(f"ds_read_b128 {vr(64+16*z+4*w,4)}, v19 offset:{2048*w+256*z}")
    for z in range(2):
        b0 = 64 + 16 * z
        a(f"s_waitcnt lgkmcnt({4-4*z})")
        for j in (0, 2):
            a(f"v_pk_add_f32 {vr(b0+j,2)}, {vr(b0+j,2)}, {vr(b0+4+j,2)}")
            a(f"v_pk_add_f32 {vr(b0+8+j,2)}, {vr(b0+8+j,2)}, {vr(b0+12+j,2)}")
        for j in (0, 2): a(f"v_pk_add_f32 {vr(b0+j,2)}, {vr(b0+j,2)}, {vr(b0+8+j,2)}")
        a(f"v_cvt_pk_bf16_f32 v{48+2*z}, v{b0}, v{b0+1}"); a(f"v_cvt_pk_bf16_f32 v{49+2*z}, v{b0+2}, v{b0+3}")
        a(f"v_min_u32 v{48+2*z}, -2, v{48+2*z}"); a(f"v_min_u32 v{49+2*z}, -2, v{49+2*z}")
    store_local([f"buffer_store_dwordx4 v[48:51], v3, {WS}, {sT3} offen"])
    stamp(5)
    a("s_branch L_exit")

    lab("L_helper")
    if hprio: a(f"s_setprio {hprio}")
    a("v_lshrrev_b32 v12, 4, v0"); a("v_and_b32 v13, 15, v0")
    a("v_mov_b32 v14, 0"); a("v_lshlrev_b32 v15, 4, v0")
    a("v_bfe_u32 v1, v0, 2, 2"); a("v_lshl_add_u32 v10, v12, 3, v1"); a("v_and_b32 v11, 3, v0")
    a("s_getreg_b32 s81, hwreg(HW_REG_XCC_ID, 0, 4)")
    a(f"s_mov_b32 m0, {L_X:#x}")
    a(f"s_mul_i32 {sT3}, {sX}, 7"); a(f"s_add_u32 {sT3}, {sT3}, {sI}")
    a("s_waitcnt lgkmcnt(0)")
    a(f"s_sub_u32 {PHI}, {sT3}, {FFN0}")
    srd(48, 38, WS_SIZE); srd(52, 16, 2*448*2)
    a(f"buffer_load_dwordx2 v[2:3], v14, {WS}, 0 offen sc1")
    a(f"s_cmp_eq_u32 {sH}, 0"); a("s_cbranch_scc1 L_q")
    a("s_barrier")
    a("s_waitcnt vmcnt(0)")
    a("v_add_u32 v2, 0x7f4a7c15, v2"); a("v_add_u32 v3, 0x9e3779b0, v3"); a("v_and_b32 v3, -16, v3")
    a("s_branch L_qdone")
    lab("L_q")
    a(f"buffer_load_dwordx4 v15, {X}, 0 offen lds")
    a("s_mov_b32 exec_hi, 0xffff")
    a(f"buffer_load_dwordx4 v15, {X}, 0 offen offset:1024 lds")
    a("s_mov_b32 exec_hi, 0xffffff")
    for r in range(4): a(f"v_mov_b32 v{20+r}, 0x3f803f80")
    for r in range(4): a(f"v_mov_b32 v{24+r}, 0")
    a(f"v_add_u32 v1, {L_X:#x}, v15")
    a("ds_write_b128 v1, v[20:23] offset:1792"); a("ds_write_b128 v1, v[24:27] offset:2688")
    a("s_mov_b64 exec, -1")
    a("s_barrier")
    if noclr: a("s_branch L_noclrP")
    for r in range(4): a(f"v_mov_b32 v{28+r}, -1")
    a(f"s_lshl_b32 {sT0}, {sWL}, 10"); a(f"s_add_u32 {sT0}, {sT0}, {WS_O:#x}")
    a(f"buffer_store_dwordx4 v[28:31], v15, {WS}, {sT0} offen sc1")
    a(f"s_sub_u32 {sT0}, {sI}, {FFN0}"); a(f"s_cmp_lt_u32 {sT0}, 7"); a("s_cbranch_scc0 L_noclrF")
    a(f"s_mul_i32 {sT0}, {PHI}, 3584"); a(f"s_add_u32 {sT0}, {sT0}, {WS_F:#x}")
    for k in (0, 1024, 2048, 2560): a(f"buffer_store_dwordx4 v[28:31], v15, {WS}, {sT0} offen offset:{k} sc1")
    lab("L_noclrF")
    a("s_mov_b64 exec, 15")
    a(f"s_lshl_b32 {sT0}, {sWL}, 6"); a(f"s_add_u32 {sT0}, {sT0}, {WS_ST:#x}")
    a(f"buffer_store_dwordx4 v[28:31], v15, {WS}, {sT0} offen sc1")
    a(f"s_cmp_lt_u32 {sI}, {N_WO}"); a("s_cbranch_scc0 L_noclrP")
    a("s_mov_b64 exec, 0xff")
    a(f"s_lshl_b32 {sT0}, s2, 7"); a(f"s_add_u32 {sT0}, {sT0}, {WS_P:#x}")
    a(f"buffer_store_dwordx4 v[28:31], v15, {WS}, {sT0} offen sc1")
    lab("L_noclrP")
    a("s_mov_b64 exec, -1")
    a("v_mul_u32_u24 v1, 896, v11"); a("v_lshl_add_u32 v1, v12, 4, v1"); a(f"v_add_u32 v4, {L_X:#x}, v1")
    a(f"s_lshr_b32 {sT0}, {sI}, 3"); a(f"s_lshl_b32 {sT1}, {sT0}, 6"); a(f"v_add_u32 v8, {sT1}, v4")
    a(f"v_mov_b32 v9, {L_X + 2688 - 768:#x}"); a(f"s_cmp_ge_u32 {sT0}, 2"); a("s_cselect_b64 vcc, -1, 0"); a("v_cndmask_b32 v9, v8, v9, vcc")
    a("v_lshlrev_b32 v1, 7, v10"); a("v_lshl_add_u32 v1, v11, 3, v1"); a(f"v_add_u32 v16, {L_WQ:#x}, v1")
    a("s_waitcnt vmcnt(0)")
    stamp(0)
    for u in range(14): a(f"ds_read_b128 {vr(64+4*u,4)}, v4 offset:{64*u}")
    a("v_add_u32 v2, 0x7f4a7c15, v2"); a("v_add_u32 v3, 0x9e3779b0, v3"); a("v_and_b32 v3, -16, v3")
    for u in range(14):
        a(f"s_waitcnt lgkmcnt({13-u})")
        mfma(20, 64 + 4 * u, 64 + 4 * u, u == 0)
    for u in range(4): a(f"ds_read_b128 {vr(120+4*u,4)}, v{9 if u == 3 else 8} offset:{256*u}")
    a("v_and_b32 v1, 1, v0"); a("v_cmp_eq_u32 vcc, 1, v1"); a("v_cndmask_b32 v20, v20, v21, vcc")
    a(f"v_mul_f32 v44, {f2u(1/448):#x}, v22")
    a(f"v_mul_f32 v45, {f2u(1/448):#x}, v20")
    a("v_fma_f32 v45, -v44, v44, v45"); a("v_max_f32 v45, 0, v45")
    a(f"v_add_f32 v45, {f2u(1e-5):#x}, v45"); a("v_rsq_f32 v45, v45")
    lds_spin("v7", F_PROG, four=24)
    stamp(13)
    for u in range(4):
        for t in range(4):
            a(f"ds_read_b64_tr_b16 {vr(136+16*u+4*t,2)}, v16 offset:{4096*u+32*t}")
            a(f"ds_read_b64_tr_b16 {vr(138+16*u+4*t,2)}, v16 offset:{4096*u+32*t+512}")
        a("s_waitcnt lgkmcnt(0)")
        for t in range(4): mfma(24 + 4 * t, 136 + 16 * u + 4 * t, 120 + 4 * u, u == 0)
    a("v_lshrrev_b32 v1, 2, v13")
    for t in range(1, 4):
        a(f"v_cmp_eq_u32 vcc, {t}, v1")
        for j in range(4): a(f"v_cndmask_b32 v{24+j}, v{24+j}, v{24+4*t+j}, vcc")
    for j in range(4): a(f"v_mov_b32_dpp v{32+j}, v{24+j} quad_perm:[2,2,2,2] row_mask:0xf bank_mask:0xf")
    for j in range(4): a(f"v_fma_f32 v{24+j}, -v44, v{32+j}, v{24+j}")
    for j in range(4): a(f"v_mul_f32 v{24+j}, v{24+j}, v45")
    a("v_mov_b32 v20, v2"); a("v_or_b32 v21, s81, v3")
    a("v_cvt_pk_bf16_f32 v22, v24, v25"); a("v_cvt_pk_bf16_f32 v23, v26, v27")
    a("v_lshlrev_b32 v1, 6, v1"); a("v_lshl_add_u32 v1, v12, 4, v1"); a("v_lshl_add_u32 v1, v11, 8, v1")
    a(f"s_lshl_b32 {sT0}, {sWL}, 9"); a(f"s_add_u32 {sT0}, {sT0}, {WS_Q:#x}")
    a("s_mov_b32 exec_lo, 0x33333333"); a("s_mov_b32 exec_hi, 0x33333333")
    if not noq: a(f"buffer_store_dwordx4 v[20:23], v1, {WS}, {sT0} offen sc1")
    a("s_mov_b64 exec, -1")
    stamp(1)
    if noq: a("v_mov_b32 v33, 0"); a("s_branch L_noq")
    if qtrig > 1: lds_spin("v6", F_PROG, ge=qtrig)
    a("v_lshlrev_b32 v1, 4, v13"); a("v_lshl_add_u32 v4, v12, 9, v1")
    a(f"s_lshl_b32 {sT0}, {sX}, 14"); a(f"s_lshl_b32 {sT1}, {sB}, 8"); a(f"s_add_u32 {sT0}, {sT0}, {sT1}"); a(f"s_add_u32 {sT0}, {sT0}, {WS_Q:#x}")
    a(f"s_add_u32 {sT1}, {sT0}, 4096"); a(f"s_add_u32 {sT2}, {sT0}, 8192"); a(f"s_add_u32 {sT3}, {sT0}, 12288")
    a(f"s_mov_b32 {sCNT}, 0")
    lab("L_qpoll")
    for u in range(8): a(f"buffer_load_dwordx4 {vr(64+4*u,4)}, v4, {WS}, {(sT0,sT1,sT2,sT3)[u>>1]} offen offset:{2048*(u&1)} sc1")
    a(f"s_add_u32 {sCNT}, {sCNT}, 1"); a(f"s_cmp_gt_u32 {sCNT}, {SPIN_MEM}"); a("s_cbranch_scc1 L_exit")
    a("v_mov_b32 v32, 0"); a("v_mov_b32 v33, 0")
    a("s_waitcnt vmcnt(0)")
    for u in range(8):
        a(f"v_xor_b32 v34, v{64+4*u}, v2"); a(f"v_xor_b32 v35, v{65+4*u}, v21")
        a("v_or_b32 v32, v32, v34"); a("v_or_b32 v33, v33, v35")
    a("v_and_or_b32 v32, v33, -16, v32")
    a("v_cmp_ne_u32 vcc, 0, v32")
    a("s_and_b64 exec, exec, vcc"); a("s_cbranch_scc1 L_qpoll")
    a("s_mov_b64 exec, -1")
    lab("L_noq")
    a("v_lshlrev_b32 v1, 3, v0"); a(f"v_add_u32 v1, {L_QS:#x}, v1")
    for u in range(8): a(f"ds_write_b64 v1, {vr(66+4*u,2)} offset:{QP*u}")
    a("v_cmp_ne_u32 vcc, 0, v33")
    a("s_cmp_eq_u64 vcc, 0"); a(f"s_cselect_b32 {sT0}, 2, 1"); a(f"v_mov_b32 v1, {sT0}")
    a(f"ds_write_b32 v7, v1 offset:{F_QRDY}")
    lab("L_qdone")
    lds_spin("v7", F_QRDY, sSAME)
    stamp(2)
    a("v_bfe_u32 v1, v0, 2, 1"); a("v_lshl_add_u32 v1, v11, 1, v1"); a(f"v_mul_u32_u24 v1, {QP}, v1")
    a("v_lshl_add_u32 v1, v12, 4, v1"); a(f"v_add_u32 v4, {L_QS:#x}, v1")
    for u in range(8): a(f"ds_read_b128 {vr(64+4*u,4)}, v4 offset:{64*u}")
    a(f"s_lshl_b32 s80, {sH}, 15")
    a("v_xor_b32 v1, v12, v13"); a("v_lshlrev_b32 v1, 4, v1"); a("v_lshl_add_u32 v1, v13, 9, v1"); a("v_add_u32 v16, s80, v1")
    for u in range(1, 4): a(f"v_xor_b32 v{16+u}, {64*u}, v16")
    lds_spin("v6", F_PROG, ge=8+window-1)
    stamp(3)
    seq = [(t, u) for u in range(8) for t in range(4)]
    def kread(k):
        t, u = seq[k]
        a(f"ds_read_b128 {vr(96+4*k,4)}, v{16+(u&3)} offset:{8192*t+256*(u>>2)}")
    for k in range(12): kread(k)
    for k in range(32):
        if k + 12 < 32: kread(k + 12)
        t, u = seq[k]
        a(f"s_waitcnt lgkmcnt({min(12, 31-k)})")
        mfma(20 + 4 * t, 64 + 4 * u, 96 + 4 * k, u == 0)
    a("s_mov_b32 vcc_lo, 0"); a("s_mov_b32 vcc_hi, -1")
    a("v_and_b32 v1, 1, v12"); a("v_lshlrev_b32 v8, 3, v1"); a("v_lshl_add_u32 v9, v1, 4, v6")
    a("v_lshlrev_b32 v1, 8, v1"); a("v_lshl_add_u32 v1, v11, 6, v1"); a("v_and_b32 v4, 12, v0"); a("v_add_u32 v1, v1, v4")
    a("v_lshrrev_b32 v4, 5, v0"); a("v_lshl_add_u32 v1, v4, 4, v1")
    a(f"s_lshl_b32 {sT0}, {sH}, 9"); a(f"s_add_u32 {sT0}, {sT0}, {L_PT:#x}"); a(f"v_add_u32 v4, {sT0}, v1")
    for j in range(4):
        a(f"v_cndmask_b32 v{20+j}, v{20+j}, v{24+j}, vcc"); a(f"v_cndmask_b32 v{28+j}, v{28+j}, v{32+j}, vcc")
    a("v_add_f32 v20, v20, v21"); a("v_add_f32 v22, v22, v23"); a("v_add_f32 v28, v28, v29"); a("v_add_f32 v30, v30, v31")
    a("v_add_f32 v20, v20, v22"); a("v_add_f32 v21, v28, v30")
    c = f2u(1.4426950408889634 / 16)
    a(f"v_mul_f32 v20, {c:#x}, v20"); a(f"v_mul_f32 v21, {c:#x}, v21")
    a("v_max_f32 v24, v20, v21")
    allreduce("v_max_f32", [24], [28], swaps=("v_permlane32_swap_b32",))
    a("v_sub_f32 v20, v20, v24"); a("v_sub_f32 v21, v21, v24")
    a("v_exp_f32 v20, v20"); a("v_exp_f32 v21, v21")
    a(f"ds_write_b32 v9, v24 offset:{F_M}")
    a("v_add_f32 v25, v20, v21")
    a("v_cvt_pk_bf16_f32 v20, v20, v20"); a("v_cvt_pk_bf16_f32 v21, v21, v21")
    a("ds_write_b32 v4, v20"); a("ds_write_b32 v4, v21 offset:32")
    a(f"ds_write_b32 v6, v5 offset:{F_PRDY}")
    allreduce("v_add_f32", [25], [28], swaps=("v_permlane32_swap_b32",))
    for r in (24, 25): a(f"v_min_u32 v{r}, -2, v{r}")
    a(f"s_lshl_b32 {sT0}, {sWL}, 6"); a(f"s_lshl_b32 {sT1}, {sH}, 4"); a(f"s_add_u32 {sT0}, {sT0}, {sT1}"); a(f"s_add_u32 {sT0}, {sT0}, {WS_ST:#x}")
    a("s_mov_b64 exec, 0x10001")
    store_local([f"buffer_store_dwordx2 v[24:25], v8, {WS}, {sT0} offen"])
    a("s_mov_b64 exec, -1")
    stamp(4)
    if norole == 2: a("s_branch L_exit")
    srd(60, 24, 4096*448*2)
    if pf:
        a(f"s_lshl_b32 {sT0}, {sWL}, 2"); a(f"s_add_u32 {sT0}, {sT0}, {sH}"); a(f"s_mul_i32 {sT0}, {sT0}, {28*128}")
        a("v_lshlrev_b32 v1, 7, v0"); a("s_mov_b64 exec, 0xfffffff")
        a(f"buffer_load_dword v62, v1, {WO}, {sT0} offen")
        a("s_mov_b64 exec, -1")
    if norole: a("s_branch L_exit")
    a("s_mov_b32 m0, s80")
    a("v_lshrrev_b32 v8, 2, v0")
    a("v_lshlrev_b32 v1, 6, v10"); a("v_lshl_add_u32 v1, v11, 3, v1"); a("v_add_u32 v16, s80, v1")
    a(f"s_cmp_ge_u32 {sI}, {N_WO}"); a("s_cbranch_scc1 L_notwo")

    lds_spin("v6", F_PROG, ge=8+strig)
    a(f"s_lshl_b32 {sT1}, {sI}, 6")
    a("v_and_b32 v1, 1, v12"); a("v_mul_u32_u24 v1, 896, v1"); a("v_lshl_add_u32 v1, v13, 2, v1")
    a(f"s_cmp_eq_u32 {sX}, 0"); a(f"s_cselect_b32 {sT1}, {sT1}, 0x10000")
    a(f"buffer_load_dword v39, v1, {X}, {sT1} offen")
    a(f"s_lshl_b32 {sT0}, {sX}, 11"); a(f"s_lshr_b32 {sT1}, {sH}, 1"); a(f"s_lshl_b32 {sT1}, {sT1}, 3")
    a(f"s_add_u32 {sT0}, {sT0}, {sT1}"); a(f"s_add_u32 {sT0}, {sT0}, {WS_ST:#x}")
    poll([f"buffer_load_dwordx2 v[20:21], v15, {WS}, {sT0} offen", f"buffer_load_dwordx2 v[22:23], v15, {WS}, {sT0} offen offset:1024"], range(20, 24))
    stamp(5)
    dpp("v_max_f32", 24, 20, "quad_perm:[1,0,3,2]"); dpp("v_max_f32", 25, 22, "quad_perm:[1,0,3,2]")
    dpp("v_max_f32", 24, 24, "quad_perm:[2,3,0,1]"); dpp("v_max_f32", 25, 25, "quad_perm:[2,3,0,1]")
    a("v_mov_b32 v26, v24"); a("v_mov_b32 v27, v25")
    allreduce("v_max_f32", [26, 27], [28, 29], rors=(8, 4))
    a("v_sub_f32 v20, v20, v26"); a("v_sub_f32 v22, v22, v27"); a("v_sub_f32 v24, v24, v26"); a("v_sub_f32 v25, v25, v27")
    a("v_exp_f32 v20, v20"); a("v_exp_f32 v22, v22"); a("v_exp_f32 v24, v24"); a("v_exp_f32 v25, v25")
    a("v_mul_f32 v21, v21, v20"); a("v_mul_f32 v23, v23, v22")
    allreduce("v_add_f32", [21, 23], [28, 29])
    a("v_rcp_f32 v21, v21"); a("v_rcp_f32 v23, v23")
    a("v_lshlrev_b32 v38, 16, v39"); a("v_and_b32 v39, 0xffff0000, v39")
    a("v_mul_f32 v24, v24, v21"); a("v_mul_f32 v25, v25, v23")
    for bb in range(2):
        for j in range(4): a(f"v_mov_b32_dpp v{40+4*bb+j}, v{24+bb} row_newbcast:{4*j} row_mask:0xf bank_mask:0xf")
    a(f"s_lshl_b32 {sT2}, {sH}, 8"); a(f"s_add_u32 {sT2}, {sT2}, {L_RED2:#x}"); a("v_lshlrev_b32 v9, 2, v0"); a(f"v_add_u32 v36, {sT2}, v9")
    a("v_and_b32 v1, 31, v0"); a("v_lshlrev_b32 v37, 3, v1"); a(f"v_add_u32 v37, {L_RED2:#x}, v37")
    a("v_mul_u32_u24 v17, 896, v8"); a("v_lshl_add_u32 v17, v11, 4, v17")
    a(f"s_lshl_b32 {sT2}, {sX}, 2"); a(f"s_add_u32 {sT2}, {sT2}, {sH}"); a(f"s_mul_i32 {sT2}, {sT2}, {128*896}")
    a(f"s_lshl_b32 {sT1}, {sI}, 6"); a(f"s_add_u32 {sT2}, {sT2}, {sT1}")
    a(f"s_lshl_b32 {sT3}, s2, 7"); a(f"s_add_u32 {sT3}, {sT3}, {WS_P:#x}")
    lds_spin("v7", F_PROG, ge=8+wtrig, four=24)
    for k in range(8):
        dma("v17", WO, sT2)
        if k < 7: a(f"s_add_u32 {sT2}, {sT2}, {16*896}")
    a(f"s_lshl_b32 {sT0}, {sX}, 15"); a(f"s_lshl_b32 {sT1}, {sH}, 12"); a(f"s_add_u32 {sT0}, {sT0}, {sT1}"); a(f"s_add_u32 {sT0}, {sT0}, {WS_O:#x}")
    a(f"s_add_u32 {sT1}, {sT0}, 16384")
    a("s_waitcnt vmcnt(0)")
    stamp(6)
    for u in range(4):
        for t in range(2):
            a(f"ds_read_b64_tr_b16 {vr(64+8*u+4*t,2)}, v16 offset:{2048*u+32*t}")
            a(f"ds_read_b64_tr_b16 {vr(66+8*u+4*t,2)}, v16 offset:{2048*u+32*t+256}")
        if u == 2: a("s_waitcnt lgkmcnt(4)")
    if wtrig < 32: lds_spin("v6", F_PROG, ge=40, dst=sT2)
    stamp(7)
    poll([f"buffer_load_dwordx4 {vr(96+16*bb+4*u,4)}, v15, {WS}, {(sT0, sT1)[bb]} offen offset:{1024*u}" for bb in range(2) for u in range(4)],
         range(96, 128))
    a("s_waitcnt lgkmcnt(0)")
    stamp(8)
    for u in range(4):
        for bb in range(2):
            for t in range(2): mfma(20 + 8 * bb + 4 * t, 96 + 16 * bb + 4 * u, 64 + 8 * u + 4 * t, u == 0)
    for j in range(4):
        for bb in range(2):
            for t in range(2):
                d = 20 + 8 * bb + 4 * t
                a(f"v_mul_f32 v{d}, v{d}, v{40+4*bb}" if j == 0 else f"v_fmac_f32 v{d}, v{d+j}, v{40+4*bb+j}")
    a("v_permlane32_swap_b32 v20, v28"); a("v_permlane32_swap_b32 v24, v32")
    a("v_add_f32 v20, v20, v28"); a("v_add_f32 v24, v24, v32")
    a("v_permlane16_swap_b32 v20, v24"); a("v_add_f32 v20, v20, v24")
    a("ds_write_b32 v36, v20")
    a("s_waitcnt lgkmcnt(0)")
    a("s_barrier")
    a(f"s_cmp_eq_u32 {sH}, 0"); a("s_cbranch_scc0 L_exit")
    for k in range(4): a(f"ds_read_b64 {vr(20+2*k,2)}, v37 offset:{256*k}")
    a("s_mov_b32 exec_hi, 0")
    a("s_waitcnt lgkmcnt(0)")
    a("v_pk_add_f32 v[20:21], v[20:21], v[22:23]"); a("v_pk_add_f32 v[24:25], v[24:25], v[26:27]")
    a("v_pk_add_f32 v[20:21], v[20:21], v[38:39]"); a("v_pk_add_f32 v[20:21], v[20:21], v[24:25]")
    a("v_cvt_pk_bf16_f32 v20, v20, v21"); a("v_min_u32 v20, -2, v20")
    a(f"buffer_store_dword v20, v9, {WS}, {sT3} offen sc1")
    stamp(9)
    a("s_branch L_exit")

    lab("L_notwo")
    srd(64, 28, 448*1792*2); srd(68, 30, 448*1792*2); srd(72, 32, 1792*448*2)
    a(f"s_cmp_ge_u32 {sI}, {FIN0}"); a("s_cbranch_scc1 L_final")
    a("v_and_b32 v1, 7, v0"); a("v_lshlrev_b32 v1, 5, v1"); a("v_bfe_u32 v4, v0, 3, 2"); a("v_lshl_add_u32 v1, v4, 2, v1")
    a(f"v_add_u32 v1, {sH}, v1"); a("v_lshlrev_b32 v4, 9, v1")
    tagpoll("v4")
    a("v_lshlrev_b32 v48, 6, v13"); a("v_lshl_add_u32 v48, v12, 4, v48")
    a(f"s_cmp_ge_u32 {sH}, 2"); a(f"s_cselect_b32 {sT0}, 0x10000000, 0"); a(f"v_add_u32 v49, {sT0}, v48")
    a(f"s_lshl_b32 {sT0}, {sH}, 10"); a(f"s_add_u32 {sT0}, {sT0}, {L_R3:#x}"); a(f"v_add_u32 v50, {sT0}, v15")
    a(f"v_add_u32 v51, {L_R3:#x}, v15")
    a(f"s_lshl_b32 {sT0}, {sH}, 8"); a(f"s_add_u32 {sT0}, {sT0}, {L_R3S:#x}"); a("v_lshlrev_b32 v1, 2, v0"); a(f"v_add_u32 v52, {sT0}, v1")
    a("v_lshrrev_b32 v1, 5, v0"); a("v_lshlrev_b32 v1, 2, v1"); a(f"v_add_u32 v53, {L_R3S:#x}, v1")
    a(f"s_lshl_b32 {sT0}, {sH}, 7"); a(f"s_add_u32 {sT0}, {sT0}, {L_HH:#x}"); a("v_lshlrev_b32 v1, 1, v0"); a(f"v_add_u32 v54, {sT0}, v1")
    a("v_lshrrev_b32 v1, 3, v13"); a("v_lshlrev_b32 v1, 6, v1"); a("v_lshl_add_u32 v1, v12, 4, v1"); a(f"v_add_u32 v1, {sT0}, v1")
    a("v_and_b32 v4, 7, v0"); a(f"v_mov_b32 v55, {L_FL + F_ZERO:#x}")
    for t in range(8):
        a(f"v_cmp_eq_u32 vcc, {t}, v4"); a(f"v_cndmask_b32 v{56+t}, v55, v1, vcc")
    for r in range(4): a(f"v_mov_b32 v{40+r}, 0x3f803f80")
    a(f"s_lshl_b32 s16, {sH}, 10"); a(f"s_add_u32 s16, s16, {WS_P:#x}")
    for u in range(1, 4): a(f"s_add_u32 s{16+u}, s16, {4096*u}")
    a(f"s_mul_i32 {sT1}, {PHI}, 3584"); a(f"s_lshl_b32 {sT2}, {sH}, 10"); a(f"s_add_u32 {sT1}, {sT1}, {sT2}"); a(f"s_add_u32 s21, {sT1}, {WS_F:#x}")
    a(f"s_cmp_eq_u32 {sH}, 3"); a("s_cselect_b32 s20, 0, -1")
    a("s_mov_b32 s22, 0xaaaaaaaa"); a("s_mov_b32 s23, 0xaaaaaaaa")
    a("s_mov_b32 s24, 0xffff0000"); a("s_mov_b32 s25, 0xffff0000")
    a("v_mul_u32_u24 v9, 3584, v8"); a("v_lshl_add_u32 v9, v11, 4, v9")
    a("v_xor_b32 v1, v12, v13"); a("v_mul_u32_u24 v17, 896, v12"); a("v_lshl_add_u32 v17, v1, 4, v17")
    a(f"s_cmp_eq_u32 {sH}, 3"); a(f"s_cselect_b32 {sT0}, 8, 16"); a(f"v_cmp_gt_u32 vcc, {sT0}, v13")
    a("v_mov_b32 v1, 0x10000000"); a("v_cndmask_b32 v17, v1, v17, vcc")
    a("v_lshlrev_b32 v1, 8, v10"); a("v_lshl_add_u32 v1, v11, 6, v1"); a("v_bfe_u32 v4, v0, 2, 2"); a("v_lshl_add_u32 v1, v4, 4, v1")
    a("v_add_u32 v64, s80, v1")
    for q in range(1, 4): a(f"v_xor_b32 v{64+q}, {16*q}, v64")
    lds_spin("v7", F_PROG, ge=8+ptrig, four=24)
    stamp(5)
    a(f"s_mul_i32 {sT0}, {sH}, {32*3584}"); a(f"s_lshl_b32 {sT1}, {PHI}, 6"); a(f"s_add_u32 {sT0}, {sT0}, {sT1}")
    a(f"s_add_u32 {sT1}, {sT0}, {16*3584}")
    a(f"s_mov_b32 {sT2}, 0")
    lab("L_guloop")
    for m, so in ((WG, sT0), (WG, sT1), (WU, sT0), (WU, sT1)): dma("v9", m, so, win=fwin)
    a(f"s_add_u32 {sT0}, {sT0}, {128*3584}"); a(f"s_add_u32 {sT1}, {sT1}, {128*3584}")
    a(f"s_add_u32 {sT2}, {sT2}, 1"); a(f"s_cmp_lt_u32 {sT2}, 4"); a("s_cbranch_scc1 L_guloop")
    a(f"s_mul_i32 {sT0}, {PHI}, {32*896}"); a(f"s_lshl_b32 {sT1}, {sH}, 8"); a(f"s_add_u32 {sT0}, {sT0}, {sT1}")
    for k in range(8):
        dma("v17", WD, sT0, win=fwin)
        if k < 7: a(f"s_add_u32 {sT0}, {sT0}, {4*896}")
    for u in range(4):
        a(f"s_waitcnt vmcnt({20-4*u})")
        for t in range(4):
            a(f"ds_read_b64_tr_b16 {vr(80+16*u+4*t,2)}, v16 offset:{4096*u+2048*(t>>1)+32*(t&1)}")
            a(f"ds_read_b64_tr_b16 {vr(82+16*u+4*t,2)}, v16 offset:{4096*u+2048*(t>>1)+32*(t&1)+256}")
        a("s_waitcnt lgkmcnt(0)")
        for t in range(4): mfma(20 + 4 * t, 40, 80 + 16 * u + 4 * t, u == 0)
    a("s_waitcnt vmcnt(0)")
    stamp(6)
    for t in range(8):
        a(f"ds_read_b64_tr_b16 {vr(144+4*t,2)}, v{64+(t>>1)} offset:{16384+8*(t&1)}")
        a(f"ds_read_b64_tr_b16 {vr(146+4*t,2)}, v{64+(t>>1)} offset:{16384+8*(t&1)+1024}")
        if t == 5: a("s_waitcnt lgkmcnt(4)")
    a("v_cndmask_b32 v46, v20, v24, s[24:25]"); a("v_cndmask_b32 v47, v28, v32, s[24:25]")
    if ptrig < 32: lds_spin("v6", F_PROG, ge=40)
    stamp(7)
    poll([f"buffer_load_dwordx4 {vr(176+4*u,4)}, v{49 if u == 3 else 48}, {WS}, s{16+u} offen" for u in range(4)], range(176, 192))
    stamp(10)
    for u in range(4):
        mfma(192, 176 + 4 * u, 176 + 4 * u, u == 0); mfma(196, 176 + 4 * u, 40, u == 0)
    for u in range(4):
        for t in range(4): mfma(20 + 4 * t, 176 + 4 * u, 80 + 16 * u + 4 * t, u == 0)
        if u == 1:
            a("v_pk_add_f32 v[192:193], v[192:193], v[194:195]"); a("v_pk_add_f32 v[196:197], v[196:197], v[198:199]")
            a("v_cndmask_b32 v192, v192, v193, s[22:23]"); a("v_cndmask_b32 v196, v196, v197, s[22:23]")
        if u == 2:
            dpp("v_add_f32", 192, 192, "quad_perm:[2,3,0,1]"); dpp("v_add_f32", 192, 192, "row_ror:4"); dpp("v_add_f32", 192, 192, "row_ror:8")
    a("v_permlane16_swap_b32 v192, v196"); a("v_add_f32 v192, v192, v196")
    a("v_mov_b32 v196, v192"); a("v_permlane32_swap_b32 v192, v196"); a("v_add_f32 v192, v192, v196")
    a("ds_write_b32 v52, v192")
    for t in range(4): a(f"v_pk_add_f32 {vr(20+4*t,2)}, {vr(20+4*t,2)}, {vr(22+4*t,2)}")
    for t in range(4): a(f"v_permlane32_swap_b32 v{20+4*t}, v{21+4*t}")
    for t in range(4): a(f"v_add_f32 v{20+4*t}, v{20+4*t}, v{21+4*t}")
    a("v_permlane16_swap_b32 v20, v24"); a("v_permlane16_swap_b32 v28, v32")
    a("v_add_f32 v44, v20, v24"); a("v_add_f32 v45, v28, v32")
    a("ds_write_b128 v50, v[44:47]")
    a("s_waitcnt lgkmcnt(0)")
    a("s_barrier")
    for w in range(4): a(f"ds_read2_b32 {vr(192+2*w,2)}, v53 offset0:{64*w} offset1:{64*w+16}")
    for w in range(4): a(f"ds_read_b128 {vr(20+4*w,4)}, v51 offset:{1024*w}")
    a("s_waitcnt lgkmcnt(4)")
    a("v_pk_add_f32 v[192:193], v[192:193], v[194:195]"); a("v_pk_add_f32 v[196:197], v[196:197], v[198:199]")
    a("v_pk_add_f32 v[192:193], v[192:193], v[196:197]")
    a(f"v_mul_f32 v193, {f2u(1/448):#x}, v193"); a(f"v_mul_f32 v192, {f2u(1/448):#x}, v192")
    a("v_fma_f32 v192, -v193, v193, v192"); a("v_max_f32 v192, 0, v192")
    a(f"v_add_f32 v192, {f2u(1e-5):#x}, v192"); a("v_rcp_f32 v192, v192")
    a("s_waitcnt lgkmcnt(0)")
    for j in (0, 2):
        a(f"v_pk_add_f32 {vr(20+j,2)}, {vr(20+j,2)}, {vr(24+j,2)}"); a(f"v_pk_add_f32 {vr(28+j,2)}, {vr(28+j,2)}, {vr(32+j,2)}")
    for j in (0, 2): a(f"v_pk_add_f32 {vr(20+j,2)}, {vr(20+j,2)}, {vr(28+j,2)}")
    a("v_fma_f32 v20, -v193, v22, v20"); a("v_fma_f32 v21, -v193, v23, v21")
    a("v_mul_f32 v20, v20, v192"); a("v_mul_f32 v20, v20, v21")
    a("v_cvt_pk_bf16_f32 v20, v20, v20")
    a("ds_write_b16 v54, v20")
    for t in range(8): a(f"ds_read_b128 {vr(176+4*t,4)}, v{56+t}")
    for t in range(8):
        a(f"s_waitcnt lgkmcnt({7-t})")
        mfma(20, 144 + 4 * t, 176 + 4 * t, t == 0)
    a("s_mov_b32 exec_hi, s20")
    for j in range(4): a(f"v_min_u32 v{20+j}, -2, v{20+j}")
    a(f"buffer_store_dwordx4 v[20:23], v15, {WS}, s21 offen sc1")
    stamp(11)
    a("s_branch L_exit")

    lab("L_final")
    if pf:
        a(f"s_sub_u32 {sT1}, {sI}, {FIN0}"); a(f"s_lshl_b32 {sT1}, {sT1}, 2"); a(f"s_add_u32 {sT1}, {sT1}, {sH}")
        a(f"s_mul_i32 {sT2}, {sT1}, 41"); a(f"v_add_u32 v1, {sT2}, v0"); a("v_min_u32 v1, 1791, v1")
        a("v_lshrrev_b32 v4, 2, v1"); a("v_mul_u32_u24 v4, 3584, v4"); a("v_and_b32 v1, 3, v1"); a("v_lshl_add_u32 v4, v1, 7, v4")
        a(f"s_mul_i32 {sT2}, {sT1}, 36"); a(f"v_add_u32 v1, {sT2}, v0"); a("v_min_u32 v1, 1567, v1"); a("v_lshlrev_b32 v9, 7, v1")
        a(f"s_mul_i32 {sT2}, {sX}, 448"); a(f"s_and_b32 {sT2}, {sT2}, -128"); a(f"s_mul_i32 {sT3}, {sX}, {224*896}")
        lds_spin("v7", F_PROG, ge=8+ftrig, four=24)
        a("s_mov_b32 exec_hi, 0x1ff")
        a(f"buffer_load_dword v60, v4, {WG}, {sT2} offen"); a(f"buffer_load_dword v61, v4, {WU}, {sT2} offen")
        a("s_mov_b32 exec_hi, 0xf")
        a(f"buffer_load_dword v63, v9, {WD}, {sT3} offen")
        a("s_mov_b64 exec, -1")
    a(f"s_cmp_eq_u32 {sH}, 0"); a("s_cbranch_scc0 L_exit")
    a(f"s_cmp_lt_u32 {sI}, {FIN0+4}"); a("s_cbranch_scc0 L_exit")
    a(f"s_cmp_lt_u32 {sX}, 7"); a("s_cbranch_scc0 L_exit")
    srd(76, 34, 2*448*2)
    a(f"s_lshl_b32 {sT0}, {sX}, 2"); a(f"s_add_u32 {sT0}, {sT0}, {sI}"); a(f"s_sub_u32 s80, {sT0}, {FIN0}")
    a(f"s_and_b32 {sT1}, s80, 1"); a(f"s_lshr_b32 {sT2}, s80, 1")
    a("v_lshrrev_b32 v8, 3, v0"); a("v_and_b32 v9, 7, v0")
    a(f"v_add_u32 v1, {FFN0}, v8"); a(f"v_mov_b32 v4, {sT2}"); a("v_cmp_eq_u32 vcc, 7, v8"); a("v_cndmask_b32 v1, v1, v4, vcc")
    a("v_lshl_add_u32 v1, v9, 5, v1"); a("v_lshlrev_b32 v4, 9, v1")
    a("v_lshlrev_b32 v10, 3, v9"); a("v_lshl_add_u32 v11, v8, 7, v10"); a("v_lshl_add_u32 v10, v12, 1, v10")
    a("v_mul_u32_u24 v8, 3584, v8"); a("v_lshl_add_u32 v9, v9, 4, v8")
    a(f"s_mul_i32 s23, {sT1}, 896"); a(f"s_lshl_b32 {sT3}, {sT2}, 6"); a(f"s_add_u32 s23, s23, {sT3}")
    a(f"buffer_load_ushort v16, v10, {OUT}, s23 offen")
    a(f"s_lshl_b32 s24, {sT2}, 10"); a(f"s_lshl_b32 {sT3}, {sT1}, 6"); a(f"s_add_u32 s24, s24, {sT3}"); a(f"s_add_u32 s24, s24, {WS_P:#x}")
    a(f"s_lshl_b32 s16, s80, 7"); a(f"s_add_u32 s16, s16, {WS_F:#x}")
    for u in range(1, 7): a(f"s_add_u32 s{16+u}, s16, {8*3584*u}")
    tagpoll("v4")
    lds_spin("v6", F_PROG, ge=40)
    stamp(7)
    poll([f"buffer_load_dwordx2 v[24:25], v11, {WS}, s24 offen"], [24, 25])
    a("v_lshlrev_b32 v20, 16, v24"); a("v_and_b32 v21, 0xffff0000, v24"); a("v_lshlrev_b32 v22, 16, v25"); a("v_and_b32 v23, 0xffff0000, v25")
    poll([f"buffer_load_dwordx4 {vr(24+4*u,4)}, v9, {WS}, s{16+u} offen" for u in range(7)], range(24, 52))
    stamp(12)
    for st in (4, 8, 16):
        for k in range(0, 32, 2 * st):
            for j in (0, 2): a(f"v_pk_add_f32 {vr(20+k+j,2)}, {vr(20+k+j,2)}, {vr(20+k+st+j,2)}")
    a("v_permlane32_swap_b32 v20, v22"); a("v_permlane32_swap_b32 v21, v23")
    a("v_add_f32 v20, v20, v22"); a("v_add_f32 v21, v21, v23")
    a("v_permlane16_swap_b32 v20, v21"); a("v_add_f32 v20, v20, v21")
    dpp("v_add_f32", 20, 20, "row_ror:8")
    a("v_cvt_pk_bf16_f32 v20, v20, v20")
    a("s_mov_b32 exec_lo, 0x00ff00ff"); a("s_mov_b32 exec_hi, 0x00ff00ff")
    a(f"buffer_store_short v20, v10, {OUT}, s23 offen")
    a("s_mov_b64 exec, 1")
    a("s_cmp_eq_u32 s80, 0"); a("s_cbranch_scc0 L_exit")
    a(f"buffer_store_dwordx2 v[2:3], v14, {WS}, 0 offen sc1")
    lab("L_exit")
    if stamps:
        a("s_mov_b64 exec, -1")
        a("s_waitcnt vmcnt(0) lgkmcnt(0)")
        a("s_memrealtime s[100:101]"); a("s_waitcnt lgkmcnt(0)"); a("s_mov_b32 s98, s100"); a("s_mov_b32 s99, s82")
        for k in range(16): a(f"v_mov_b32 v{20+k}, s{84+k}")
        a(f"s_lshl_b32 {sT0}, s2, 3"); a(f"s_add_u32 {sT0}, {sT0}, {sWAVE}"); a(f"s_lshl_b32 {sT0}, {sT0}, 6"); a(f"s_add_u32 {sT0}, {sT0}, {WS_STAMP:#x}")
        a("v_mov_b32 v1, 0"); a("s_mov_b64 exec, 1")
        for k in range(4): a(f"buffer_store_dwordx4 {vr(20+4*k,4)}, v1, {WS}, {sT0} offen offset:{16*k} sc1")
    if pa >= 0:
        a("s_cmp_eq_u32 s2, 255"); a("s_cbranch_scc0 L_end")
        a(f"s_cmp_eq_u32 {sWAVE}, 7"); a("s_cbranch_scc0 L_end")
        lab("L_pr0")
        a("s_memrealtime s[98:99]"); a("s_waitcnt lgkmcnt(0)"); a("s_sub_u32 s98, s98, s82")
        a("s_cmp_lt_u32 s98, 3500"); a("s_cbranch_scc1 L_pr0")
        a(f"s_mov_b32 s10, {WS_STAMP + 4*pa:#x}"); a(f"s_mov_b32 s11, {WS_STAMP + 4*pb:#x}")
        a(f"buffer_load_dword v20, v1, {WS}, s10 offen sc1"); a(f"buffer_load_dword v21, v1, {WS}, s11 offen sc1")
        a("s_waitcnt vmcnt(0)"); a("v_sub_u32 v20, v20, v21"); a("v_readfirstlane_b32 s10, v20")
        a("s_add_u32 s10, s10, 200"); a("s_and_b32 s10, s10, 0xfff"); a("s_lshl_b32 s10, s10, 3"); a("s_add_u32 s10, s10, 4000")
        lab("L_pr1")
        a("s_memrealtime s[98:99]"); a("s_waitcnt lgkmcnt(0)"); a("s_sub_u32 s98, s98, s82")
        a("s_cmp_lt_u32 s98, s10"); a("s_cbranch_scc1 L_pr1")
    if pwg >= 0:
        a(f"s_cmp_eq_u32 s2, {pwg}"); a("s_cbranch_scc0 L_end")
        a(f"s_cmp_eq_u32 {sWAVE}, {pwave}"); a("s_cbranch_scc0 L_end")
        if padto: a(f"s_mov_b32 s10, {padto}")
        else:
            a(f"s_sub_u32 s10, s{84+pst}, s82"); a("s_and_b32 s10, s10, 0xfff"); a("s_lshl_b32 s10, s10, 3"); a("s_add_u32 s10, s10, 4000")
        lab("L_prl")
        a("s_memrealtime s[98:99]"); a("s_waitcnt lgkmcnt(0)"); a("s_sub_u32 s98, s98, s82")
        a("s_cmp_lt_u32 s98, s10"); a("s_cbranch_scc1 L_prl")
    lab("L_end")
    a("s_endpgm")
    body = pad(L)
    body += ['.section .rodata,"a"', ".p2align 6", f".amdhsa_kernel {NAME}_kernel",
             "  .amdhsa_next_free_vgpr 224", "  .amdhsa_next_free_sgpr 102", "  .amdhsa_accum_offset 224",
             "  .amdhsa_group_segment_fixed_size 0", "  .amdhsa_kernarg_size 96", "  .amdhsa_user_sgpr_count 2",
             "  .amdhsa_user_sgpr_kernarg_segment_ptr 1", "  .amdhsa_system_sgpr_workgroup_id_x 1",
             "  .amdhsa_float_denorm_mode_32 3", ".end_amdhsa_kernel"]
    return "\n".join(body) + "\n"

if __name__ == "__main__":
    kw = {}
    for arg in sys.argv[2:]:
        k, v = arg.split("="); kw[k] = int(v)
    open(sys.argv[1], "w").write(gen(**kw))
```

```python
import sys, struct
from asmlib import pad
NAME = "sequential_preLN__sliding_block_cached__glu_gated_bilinear__decode"

def f2u(x): return struct.unpack("<I", struct.pack("<f", x))[0]

WS_E, WS_RDY, WS_P, WS_ST, WS_Q, WS_O, WS_F = 0x0, 0x4000, 0xC0000, 0x10000, 0x20000, 0x40000, 0x80000
WS_HN = 0x6000
Q_ALT = 0x100000
WS_STAMP = 0x100000
WS_SIZE = 0x200000
L_WQ = 0x20000
L_RED = 0x20000
L_RED2, L_R3, L_R3S, L_HH, L_G = 0x22000, 0x22400, 0x23400, 0x23800, 0x23A00
L_X, L_QS, L_PT, L_FL = 0x24000, 0x24E00, 0x25F00, 0x26700
LDS_SIZE = 0x26800
QP = 528
F_QRDY, F_CNT, F_DONE, F_CNT2, F_PROG, F_PRDY, F_M, F_ZERO = 0, 4, 8, 12, 16, 32, 64, 112
SPIN_LDS, SPIN_MEM = 1 << 21, 1 << 18
N_WO, FFN0, FIN0, REF0 = 14, 14, 21, 25
PATS = {1: ([13, 12, 15, 17, 20], [14, 16], [10, 11, 18, 19]),
        2: ([13, 11, 15, 17, 20], [12, 16], [10, 14, 18, 19]),
        3: ([13, 12, 17, 18, 20], [14, 16], [10, 11, 15, 19]),
        4: ([13, 10, 16, 17, 20], [12, 19], [11, 14, 15, 18]),
        5: ([13, 14, 15, 17, 20], [12, 16], [10, 11, 18, 19]),
        6: ([13, 10, 16, 17, 20], [11, 15], [12, 14, 18, 19])}

def gen(window=6, vwin=0, w0=8, stamps=False, force_sc1=False, pat=5, qtrig=20, strig=20, wtrig=32, wptrig=32,
        touch=0, hint=1, hcnt=20, ofirst=1, pfirst=1, vtrig=0, hpos=1, pskip=0, pdepth=1, nofw=0, nowo=0, wqgap=0, nodup=1, ftrig=33, kf=0, kp=0, kd=0, kw=0, early=0, psleep=0, fsleep=0, fdelay=0, rsl=0, osleep=0, p8=1,
        align=1, refp=0, reff=0, rsleep=1, rdepth=12, spec=1, lmask=-1, hmask=-1, pa=-1, pb=-1, pwg=-1, pwave=0, padto=0,
        patv=None):
    L = []
    def a(s): L.append("    " + s)
    def lab(s): L.append(s + ":")
    uid = [0]
    def new(p): uid[0] += 1; return f"L_{p}{uid[0]}"
    sWAVE, sX, sI, sB, sS, sWL, sH = "s3", "s4", "s5", "s6", "s7", "s8", "s9"
    sT0, sT1, sT2, sT3, sCNT, sSAME = "s10", "s11", "s12", "s13", "s14", "s15"
    K, V, WS, X, WQ, WO, WG, WU, WD, OUT = (f"s[{n}:{n+3}]" for n in range(40, 80, 4))
    PHI = "s83"
    vw = vwin or window
    far = []
    def page():
        if align: L.append(".p2align 12")
    def srd(n, lo, size):
        a(f"s_mov_b32 s{n}, s{lo}"); a(f"s_mov_b32 s{n+1}, s{lo+1}")
        a(f"s_mov_b32 s{n+2}, {size:#x}"); a(f"s_mov_b32 s{n+3}, 0x20000")
    side = ["L"]
    def stamp(k):
        if stamps and ((lmask if side[0] == "L" else hmask) >> k) & 1:
            a("s_memrealtime s[100:101]"); a("s_waitcnt lgkmcnt(0)"); a(f"s_mov_b32 s{84+k}, s100")
    def vr(b, n): return f"v[{b}:{b+n-1}]"
    def mfma(d, x, y, first): a(f"v_mfma_f32_16x16x32_bf16 {vr(d,4)}, {vr(x,4)}, {vr(y,4)}, " + ("0" if first else vr(d,4)))
    def bound():
        a(f"s_add_u32 {sCNT}, {sCNT}, 1"); a(f"s_cmp_gt_u32 {sCNT}, {SPIN_MEM}"); a("s_cbranch_scc1 L_exit")
    def lds_spin(vaddr, off, dst=sT0, four=None, ge=1):
        l, d = new("spin"), new("got")
        a(f"s_mov_b32 {sCNT}, 0")
        lab(l)
        if four is None: a(f"ds_read_b32 v1, {vaddr} offset:{off}")
        else: a(f"ds_read_b128 {vr(four,4)}, {vaddr} offset:{off}")
        a(f"s_add_u32 {sCNT}, {sCNT}, 1")
        a("s_waitcnt lgkmcnt(0)")
        if four is not None:
            a(f"v_min3_u32 v1, v{four}, v{four+1}, v{four+2}"); a(f"v_min_u32 v1, v1, v{four+3}")
        a(f"v_readfirstlane_b32 {dst}, v1")
        a(f"s_cmp_ge_u32 {dst}, {ge}"); a(f"s_cbranch_scc1 {d}")
        a(f"s_cmp_gt_u32 {sCNT}, {SPIN_LDS}"); a("s_cbranch_scc1 L_exit")
        a("s_sleep 1"); a(f"s_branch {l}")
        lab(d)
    def dpp(op, d, s, ctl): a(f"{op}_dpp v{d}, v{s}, v{s} {ctl} row_mask:0xf bank_mask:0xf")
    def allreduce(op, regs, tmps, swaps=("v_permlane16_swap_b32", "v_permlane32_swap_b32"), rors=(8, 4, 2, 1)):
        for sh in rors:
            for r in regs: dpp(op, r, r, f"row_ror:{sh}")
        for sw in swaps:
            for r, t in zip(regs, tmps): a(f"v_mov_b32 v{t}, v{r}")
            for r, t in zip(regs, tmps): a(f"{sw} v{r}, v{t}")
            for r, t in zip(regs, tmps): a(f"{op} v{r}, v{r}, v{t}")
    def store_local(t):
        if force_sc1:
            a(t + " sc1"); return
        l1, l2 = new("far"), new("st")
        a(f"s_cmp_eq_u32 {sSAME}, 2"); a(f"s_cbranch_scc0 {l1}")
        a(t)
        lab(l2)
        far.append((l1, t, l2))
    def flush_far():
        for l1, t, l2 in far:
            lab(l1); a(t + " sc1"); a(f"s_branch {l2}")
        far.clear()
    def maxchain(dst, regs, acc=False):
        rest = list(regs)
        if not acc:
            if len(rest) == 2:
                a(f"v_max_u32 v{dst}, v{rest[0]}, v{rest[1]}"); return
            a(f"v_max3_u32 v{dst}, v{rest[0]}, v{rest[1]}, v{rest[2]}"); rest = rest[3:]
        while rest:
            if len(rest) >= 2:
                a(f"v_max3_u32 v{dst}, v{dst}, v{rest[0]}, v{rest[1]}"); rest = rest[2:]
            else:
                a(f"v_max_u32 v{dst}, v{dst}, v{rest[0]}"); rest = []
    def poll(loads, regs, tmp=1, sleep=0):
        l = new("poll")
        a(f"s_mov_b32 {sCNT}, 0")
        lab(l)
        if sleep: a(f"s_sleep {sleep}")
        for t in loads: a(t + " sc1")
        bound()
        a("s_waitcnt vmcnt(0)")
        maxchain(tmp, regs)
        a(f"v_cmp_eq_u32 vcc, -1, v{tmp}")
        a("s_and_b64 exec, exec, vcc")
        a(f"s_cbranch_scc1 {l}")
        a("s_mov_b64 exec, -1")
    def tagpoll(voff):
        l = new("tag")
        a(f"s_mov_b32 {sCNT}, 0"); a(f"s_mov_b32 {sT0}, {WS_RDY:#x}")
        lab(l)
        a(f"buffer_load_dwordx2 v[24:25], {voff}, {WS}, {sT0} offen sc1")
        bound()
        a("s_waitcnt vmcnt(0)")
        a("v_xor_b32 v24, v24, v2"); a("v_xor_b32 v25, v25, v3"); a("v_or_b32 v24, v24, v25")
        a("v_cmp_ne_u32 vcc, 0, v24")
        a("s_and_b64 exec, exec, vcc"); a(f"s_cbranch_scc1 {l}")
        a("s_mov_b64 exec, -1")
    def refresher(voff, soff):
        l = new("ref")
        a("v_mov_b32 v20, -1"); a(f"s_mov_b32 {sCNT}, 0")
        lab(l)
        a(f"buffer_load_dword v20, {voff}, {WS}, {soff} offen sc1")
        bound()
        a(f"s_waitcnt vmcnt({rdepth-1})")
        a(f"s_sleep {rsleep}")
        a("v_cmp_eq_u32 vcc, -1, v20")
        a("s_and_b64 exec, exec, vcc"); a(f"s_cbranch_scc1 {l}")
        a("s_branch L_exit")
    def gwait(k):
        if not k: return
        l, d = new("gw"), new("gd")
        a("v_bfe_u32 v1, v0, 4, 1"); a("v_lshlrev_b32 v1, 14, v1"); a("v_lshl_add_u32 v221, v13, 4, v1")
        a(f"s_lshl_b32 s31, {sX}, 15"); a(f"s_add_u32 s31, s31, {WS_O:#x}"); a(f"s_mov_b32 {sCNT}, 0")
        lab(l)
        a(f"buffer_load_dword v222, v221, {WS}, s31 offen sc1")
        bound()
        a("s_waitcnt vmcnt(0)")
        a("v_cmp_ne_u32 vcc, -1, v222"); a(f"s_bcnt1_i32_b32 {sT0}, vcc_lo")
        a(f"s_cmp_ge_u32 {sT0}, {k}"); a(f"s_cbranch_scc1 {d}")
        a("s_sleep 2"); a(f"s_branch {l}")
        lab(d)
    def dma(voff, srd_, soff):
        if not (nowo if srd_ == WO else nofw): a(f"buffer_load_dwordx4 {voff}, {srd_}, {soff} offen lds")
        a("s_add_u32 m0, m0, 1024")
    def maketag():
        a("v_add_u32 v2, 0x7f4a7c15, v2"); a("v_add_u32 v3, 0x9e3779b0, v3"); a("v_and_b32 v3, -16, v3")

    L.append(f"; @launch grid=(256,1,1) block=(512,1,1) lds={LDS_SIZE}")
    L.append('.amdgcn_target "amdgcn-amd-amdhsa--gfx950"')
    L.append(".text"); L.append(f".globl {NAME}_kernel"); page(); L.append(".p2align 8")
    L.append(f".type {NAME}_kernel,@function"); lab(f"{NAME}_kernel")
    a("s_cmp_ge_u32 s2, 256"); a("s_cbranch_scc1 L_end0")
    a("s_load_dwordx16 s[16:31], s[0:1], 0")
    a("s_load_dwordx8 s[32:39], s[0:1], 64")
    if stamps or pwg >= 0:
        for k in range(16): a(f"s_mov_b32 s{84+k}, 0")
        a("s_memrealtime s[82:83]")
    a("v_lshrrev_b32 v1, 6, v0")
    a("v_and_b32 v0, 63, v0")
    a(f"v_readfirstlane_b32 {sWAVE}, v1")
    a("v_and_b32 v2, 31, v0"); a(f"v_mov_b32 v7, {L_FL:#x}"); a("v_lshl_add_u32 v3, v2, 2, v7"); a("v_mov_b32 v4, 0")
    a("ds_write_b32 v3, v4")
    a(f"s_and_b32 {sX}, s2, 7"); a(f"s_lshr_b32 {sI}, s2, 3")
    a(f"s_lshr_b32 {sB}, {sI}, 4"); a(f"s_and_b32 {sS}, {sI}, 15")
    a(f"s_lshl_b32 {sWL}, {sX}, 5"); a(f"s_add_u32 {sWL}, {sWL}, {sI}")
    a(f"s_and_b32 {sH}, {sWAVE}, 3")
    a(f"v_lshl_add_u32 v6, {sH}, 2, v7")
    a("v_mov_b32 v5, 1")
    a(f"s_cmp_ge_u32 {sWAVE}, 4"); a("s_cbranch_scc1 L_helper")

    tb, hb, sb = patv or PATS[pat]
    PAIR = 1 << tb[0]
    def toff(r): return sum(((r >> j) & 1) << tb[j + 1] for j in range(4))
    a("v_lshrrev_b32 v1, 3, v0"); a("v_and_b32 v4, 7, v0"); a("v_lshlrev_b32 v4, 4, v4"); a("v_lshl_add_u32 v16, v1, 13, v4")
    a(f"s_lshr_b32 {sT0}, {sI}, 3"); a(f"s_lshl2_add_u32 {sT0}, {sH}, {sT0}"); a(f"s_lshl_b32 {sT0}, {sT0}, 18")
    a(f"s_and_b32 {sT1}, {sI}, 7"); a(f"s_lshl3_add_u32 {sT1}, {sX}, {sT1}"); a(f"s_lshl_b32 {sT1}, {sT1}, 7")
    a(f"s_add_u32 {sT3}, {sT0}, {sT1}")
    a(f"s_lshl_b32 {sT1}, {sH}, 12"); a(f"s_add_u32 m0, {sT1}, {L_WQ:#x}")
    a("s_mov_b32 s58, 0x380000"); a("s_mov_b32 s59, 0x20000"); a("s_mov_b32 s42, 0x10000000"); a("s_mov_b32 s43, 0x20000")
    a("v_lshrrev_b32 v1, 5, v0"); a("v_xor_b32 v2, v2, v1"); a("v_lshlrev_b32 v2, 4, v2")
    a("v_lshl_add_u32 v8, v1, 9, v2")
    a(f"v_add_u32 v9, {PAIR - 1024}, v8"); a("v_xor_b32 v9, 32, v9")
    a(f"s_lshl3_add_u32 {sT0}, {sB}, {sX}"); a(f"s_lshl_b32 {sT0}, {sT0}, 24")
    a(f"s_add_u32 s80, {sT0}, 0xE00000")
    for reg, bits in ((sH, hb), (sS, sb)):
        j = 0
        while j < len(bits):
            k = j
            while k + 1 < len(bits) and bits[k + 1] == bits[k] + 1: k += 1
            a(f"s_bfe_u32 {sT0}, {reg}, {((k - j + 1) << 16) | j:#x}"); a(f"s_lshl_b32 {sT0}, {sT0}, {bits[j]}"); a(f"s_add_u32 s80, s80, {sT0}")
            j = k + 1
    a(f"s_lshl_b32 {sT2}, {sH}, 15")
    a("s_waitcnt lgkmcnt(0)")
    stamp(9)
    a("s_mov_b64 s[56:57], s[22:23]"); a("s_mov_b64 s[40:41], s[18:19]")
    landed = 0; sig = False
    order = []; kq = 0
    for n in range(33):
        while kq < 4 and n >= kq * wqgap:
            order.append(("q", kq)); kq += 1
        if n < 32: order.append(("k", n))
    lastq = max(i for i, o in enumerate(order) if o[0] == "q") + 1
    prev = "q"
    for idx, (kind, n) in enumerate(order):
        if kind == "q":
            if n: a(f"s_add_u32 m0, {sT1}, {L_WQ + 1024*n:#x}"); a(f"s_add_u32 {sT3}, {sT3}, 65536")
            a(f"buffer_load_dwordx4 v16, {WQ}, {sT3} offen nt lds")
        else:
            r, h = n >> 1, n & 1
            if h == 0 or prev == "q": a(f"s_add_u32 m0, {sT2}, {2048*r}")
            if h == 0: a(f"s_add_u32 {sT0}, s80, {toff(r):#x}")
            a(f"buffer_load_dwordx4 v{8+2*(r&3)+h}, {K}, {sT0} offen offset:{1024*h} nt lds")
            if n == 1:
                for k in range(2, 8): a(f"v_xor_b32 v{8+k}, {32*(k&~1)}, v{8+(k&1)}")
        prev = kind
        cnt = idx + 1
        w = w0 if cnt < w0 else window
        if cnt - (w - 1) > landed:
            first = landed == 0
            if first: a("s_barrier")
            landed = cnt - (w - 1); a(f"s_waitcnt vmcnt({w-1})")
            if first: stamp(6)
        if landed >= lastq and not sig:
            sig = True; a(f"ds_write_b32 v6, v5 offset:{F_PROG}")
            stamp(7)
        if idx - 3 == qtrig:
            a("v_mov_b32 v17, 2"); a(f"ds_write_b32 v6, v17 offset:{F_PROG}")
        if idx == 19: stamp(8)
        if idx == 24:
            srd(44, 20, 0x10000000); srd(48, 38, WS_SIZE)
            a("v_bfe_u32 v1, v0, 4, 1"); a("v_and_b32 v2, 15, v0"); a("v_lshlrev_b32 v2, 4, v2"); a("v_lshl_add_u32 v16, v1, 9, v2")
            a("v_lshrrev_b32 v1, 5, v0"); a(f"v_lshl_add_u32 v16, v1, {tb[0]}, v16")
    stamp(0)
    n = 0
    for r in range(16):
        a(f"s_add_u32 {sT0}, s80, {toff(r):#x}")
        for h in range(2):
            a(f"buffer_load_dwordx4 {vr(64+8*r+4*h,4)}, v16, {V}, {sT0} offen offset:{256*h} nt")
            n += 1
            if n < 32: a(f"s_waitcnt vmcnt({(window if n < window else vw)-1})")
            if n in (window - 1, wtrig, wptrig, strig, ftrig, 32):
                a(f"v_mov_b32 v9, {8+n}"); a(f"ds_write_b32 v6, v9 offset:{F_PROG}")
            if n == window - 1: stamp(1)
            if n == window + 1:
                a("v_and_b32 v1, 1, v0"); a("v_lshlrev_b32 v1, 4, v1"); a("v_mov_b32 v2, 0xffff"); a("v_lshlrev_b32 v2, v1, v2")
                a("v_bfe_u32 v1, v0, 1, 2")
                for q in range(4):
                    a(f"v_cmp_eq_u32 vcc, {q}, v1"); a(f"v_cndmask_b32 v{20+q}, 0, v2, vcc")
                a("v_bfe_u32 v1, v0, 3, 1"); a("v_lshlrev_b32 v1, 8, v1"); a("v_lshrrev_b32 v2, 4, v0"); a("v_lshl_add_u32 v1, v2, 6, v1")
                a(f"s_lshl_b32 {sT1}, {sH}, 9"); a(f"s_add_u32 {sT1}, {sT1}, {L_PT:#x}"); a(f"v_add_u32 v17, {sT1}, v1")
                a(f"s_lshl_b32 {sT1}, {sH}, 11"); a(f"s_add_u32 {sT1}, {sT1}, {L_RED:#x}")
                a("v_lshlrev_b32 v1, 4, v0"); a(f"v_add_u32 v18, {sT1}, v1")
            if n == window + 3:
                a("v_and_b32 v1, 47, v0"); a("v_lshlrev_b32 v1, 4, v1"); a("v_bfe_u32 v2, v0, 4, 1"); a("v_lshl_add_u32 v1, v2, 10, v1")
                a(f"v_add_u32 v19, {L_RED:#x}, v1")
                a("v_lshrrev_b32 v1, 5, v0"); a("v_lshl_add_u32 v4, v1, 4, v7"); a(f"v_lshl_add_u32 v8, {sH}, 2, v4")
                a("v_lshlrev_b32 v3, 8, v0")
                a(f"s_lshr_b32 {sT3}, {sWL}, 4"); a(f"s_lshl_b32 {sT3}, {sT3}, 14"); a(f"s_lshl4_add_u32 {sT3}, {sS}, {sT3}")
                a(f"s_add_u32 {sT3}, {sT3}, {WS_O:#x}")
    stamp(2)
    lds_spin("v7", F_PRDY, four=24)
    for j in range(4): a(f"ds_read_b128 {vr(24+4*j,4)}, v17 offset:{16*j}")
    a(f"ds_read_b128 v[56:59], v4 offset:{F_M}"); a(f"ds_read_b32 v60, v8 offset:{F_M}")
    a(f"ds_read_b32 v2, v7 offset:{F_QRDY}")
    a("s_waitcnt lgkmcnt(0)")
    a(f"v_readfirstlane_b32 {sSAME}, v2")
    stamp(3)
    def amask(r):
        for j in range(4): a(f"v_and_b32 v{40+4*(r&1)+j}, v{24+r}, v{20+j}")
    amask(0)
    a("v_max3_f32 v56, v56, v57, v58"); a("v_max_f32 v56, v56, v59"); a("v_sub_f32 v56, v60, v56"); a("v_exp_f32 v56, v56")
    for r in range(16):
        if r < 15: amask(r + 1)
        if r == 1: a("v_mov_b32 v57, v56")
        for h in range(2):
            if 31 - 2 * r - h < vw: a(f"s_waitcnt vmcnt({31-2*r-h})")
            mfma(48 + 4 * h, 40 + 4 * (r & 1), 64 + 8 * r + 4 * h, r == 0)
    if vtrig: a("v_mov_b32 v9, 41"); a(f"ds_write_b32 v6, v9 offset:{F_PROG}")
    stamp(4)
    for h in range(2):
        for j in (0, 2): a(f"v_pk_mul_f32 {vr(48+4*h+j,2)}, {vr(48+4*h+j,2)}, v[56:57]")
        a(f"ds_write_b128 v18, {vr(48+4*h,4)} offset:{1024*h}")
    a("s_mov_b64 exec, 1")
    a(f"ds_add_rtn_u32 v1, v7, v5 offset:{F_CNT}")
    a("s_mov_b64 exec, -1")
    for z in range(2):
        for w in range(4): a(f"ds_read_b128 {vr(64+16*z+4*w,4)}, v19 offset:{2048*w+256*z}")
    a("s_waitcnt lgkmcnt(8)")
    a(f"v_readfirstlane_b32 {sT0}, v1")
    a(f"s_cmp_eq_u32 {sT0}, 3"); a("s_cbranch_scc0 L_exitL")
    for z in range(2):
        b0 = 64 + 16 * z
        a(f"s_waitcnt lgkmcnt({4-4*z})")
        for j in (0, 2):
            a(f"v_pk_add_f32 {vr(b0+j,2)}, {vr(b0+j,2)}, {vr(b0+4+j,2)}")
            a(f"v_pk_add_f32 {vr(b0+8+j,2)}, {vr(b0+8+j,2)}, {vr(b0+12+j,2)}")
        for j in (0, 2): a(f"v_pk_add_f32 {vr(b0+j,2)}, {vr(b0+j,2)}, {vr(b0+8+j,2)}")
        a(f"v_cvt_pk_bf16_f32 v{48+2*z}, v{b0}, v{b0+1}"); a(f"v_cvt_pk_bf16_f32 v{49+2*z}, v{b0+2}, v{b0+3}")
        a(f"v_min_u32 v{48+2*z}, -2, v{48+2*z}"); a(f"v_min_u32 v{49+2*z}, -2, v{49+2*z}")
    store_local(f"buffer_store_dwordx4 v[48:51], v3, {WS}, {sT3} offen")
    a(f"ds_write_b32 v7, v5 offset:{F_DONE}")
    stamp(5)
    lab("L_exitL")
    if stamps or pwg >= 0: a("s_branch L_exit")
    lab("L_end0")
    a("s_endpgm")
    flush_far()

    page()
    lab("L_helper")
    side[0] = "H"
    a("v_lshrrev_b32 v12, 4, v0"); a("v_and_b32 v13, 15, v0")
    a("v_mov_b32 v14, 0"); a("v_lshlrev_b32 v15, 4, v0")
    a("v_bfe_u32 v1, v0, 2, 2"); a("v_lshl_add_u32 v10, v12, 3, v1"); a("v_and_b32 v11, 3, v0")
    a("s_getreg_b32 s81, hwreg(HW_REG_XCC_ID, 0, 4)")
    a(f"s_mov_b32 m0, {L_X:#x}")
    a(f"s_mul_i32 {sT3}, {sX}, 7"); a(f"s_add_u32 {sT3}, {sT3}, {sI}")
    a("s_waitcnt lgkmcnt(0)")
    a("s_barrier")
    a(f"s_sub_u32 {PHI}, {sT3}, {FFN0}")
    srd(48, 38, WS_SIZE); srd(52, 16, 2*448*2)
    a(f"buffer_load_dwordx2 v[2:3], v14, {WS}, 0 offen sc1")
    a(f"s_cmp_eq_u32 {sH}, 0"); a("s_cbranch_scc1 L_q")
    a(f"s_cmp_eq_u32 {sH}, 1"); a("s_cbranch_scc0 L_noclr")
    a(f"s_cmp_lt_u32 {sI}, {FIN0}"); a("s_cbranch_scc0 L_noclr")
    for r in range(4): a(f"v_mov_b32 v{28+r}, -1")
    a(f"s_cmp_lt_u32 {sI}, {N_WO}"); a("s_cbranch_scc1 L_clrP")
    a(f"s_mul_i32 {sT0}, {PHI}, 3584"); a(f"s_add_u32 {sT0}, {sT0}, {WS_F:#x}")
    for k in (0, 1024, 2048, 2560): a(f"buffer_store_dwordx4 v[28:31], v15, {WS}, {sT0} offen offset:{k} sc1")
    a("s_branch L_clrd")
    lab("L_clrP")
    a("v_lshrrev_b32 v1, 3, v0"); a("v_and_b32 v4, 7, v0"); a("v_lshlrev_b32 v4, 4, v4"); a("v_lshl_add_u32 v4, v1, 14, v4")
    if not p8: a("s_mov_b64 exec, 0xff")
    a(f"s_lshl_b32 {sT0}, s2, 7"); a(f"s_add_u32 {sT0}, {sT0}, {WS_P:#x}")
    a(f"buffer_store_dwordx4 v[28:31], v4, {WS}, {sT0} offen sc1")
    a("s_mov_b64 exec, -1")
    lab("L_clrd")
    a(f"s_lshl_b32 {sT0}, {sWL}, 4"); a(f"s_add_u32 {sT0}, {sT0}, {WS_RDY:#x}")
    a("s_waitcnt vmcnt(0)")
    maketag()
    a("s_mov_b64 exec, 1")
    a(f"buffer_store_dwordx2 v[2:3], v14, {WS}, {sT0} offen sc1")
    a("s_mov_b64 exec, -1")
    a("s_branch L_qdone")
    lab("L_noclr")
    a("s_waitcnt vmcnt(0)")
    maketag()
    a("s_branch L_qdone")
    lab("L_q")
    a(f"buffer_load_dwordx4 v15, {X}, 0 offen lds")
    a("s_mov_b32 exec_hi, 0xffff")
    a(f"buffer_load_dwordx4 v15, {X}, 0 offen offset:1024 lds")
    a("s_mov_b32 exec_hi, 0xffffff")
    for r in range(4): a(f"v_mov_b32 v{20+r}, 0x3f803f80")
    for r in range(4): a(f"v_mov_b32 v{24+r}, 0")
    a(f"v_add_u32 v1, {L_X:#x}, v15")
    a("ds_write_b128 v1, v[20:23] offset:1792"); a("ds_write_b128 v1, v[24:27] offset:2688")
    a("s_mov_b64 exec, -1")
    a("v_mul_u32_u24 v1, 896, v11"); a("v_lshl_add_u32 v1, v12, 4, v1"); a(f"v_add_u32 v4, {L_X:#x}, v1")
    a(f"s_lshr_b32 {sT0}, {sI}, 3"); a(f"s_lshl_b32 {sT1}, {sT0}, 6"); a(f"v_add_u32 v8, {sT1}, v4")
    a(f"v_mov_b32 v9, {L_X + 2688 - 768:#x}"); a(f"s_cmp_ge_u32 {sT0}, 2"); a("s_cselect_b64 vcc, -1, 0"); a("v_cndmask_b32 v9, v8, v9, vcc")
    a("v_lshlrev_b32 v1, 7, v10"); a("v_lshl_add_u32 v1, v11, 3, v1"); a(f"v_add_u32 v16, {L_WQ:#x}, v1")
    a("s_waitcnt vmcnt(0)")
    stamp(0)
    for u in range(14): a(f"ds_read_b128 {vr(64+4*u,4)}, v4 offset:{64*u}")
    maketag()
    for u in range(14):
        a(f"s_waitcnt lgkmcnt({13-u})")
        mfma(20, 64 + 4 * u, 64 + 4 * u, u == 0)
    for u in range(4): a(f"ds_read_b128 {vr(120+4*u,4)}, v{9 if u == 3 else 8} offset:{256*u}")
    a("v_and_b32 v1, 1, v0"); a("v_cmp_eq_u32 vcc, 1, v1"); a("v_cndmask_b32 v20, v20, v21, vcc")
    a(f"v_mul_f32 v44, {f2u(1/448):#x}, v22")
    a(f"v_mul_f32 v45, {f2u(1/448):#x}, v20")
    a("v_fma_f32 v45, -v44, v44, v45"); a("v_max_f32 v45, 0, v45")
    a(f"v_add_f32 v45, {f2u(1e-5):#x}, v45"); a("v_rsq_f32 v45, v45")
    lds_spin("v7", F_PROG, four=24)
    stamp(13)
    for u in range(4):
        for t in range(4):
            a(f"ds_read_b64_tr_b16 {vr(136+16*u+4*t,2)}, v16 offset:{4096*u+32*t}")
            a(f"ds_read_b64_tr_b16 {vr(138+16*u+4*t,2)}, v16 offset:{4096*u+32*t+512}")
        a("s_waitcnt lgkmcnt(0)")
        for t in range(4): mfma(24 + 4 * t, 136 + 16 * u + 4 * t, 120 + 4 * u, u == 0)
    a("v_lshrrev_b32 v1, 2, v13")
    for t in range(1, 4):
        a(f"v_cmp_eq_u32 vcc, {t}, v1")
        for j in range(4): a(f"v_cndmask_b32 v{24+j}, v{24+j}, v{24+4*t+j}, vcc")
    for j in range(4): a(f"v_mov_b32_dpp v{32+j}, v{24+j} quad_perm:[2,2,2,2] row_mask:0xf bank_mask:0xf")
    for j in range(4): a(f"v_fma_f32 v{24+j}, -v44, v{32+j}, v{24+j}")
    for j in range(4): a(f"v_mul_f32 v{24+j}, v{24+j}, v45")
    a("v_mov_b32 v20, v2"); a("v_or_b32 v21, s81, v3")
    a("v_cvt_pk_bf16_f32 v22, v24, v25"); a("v_cvt_pk_bf16_f32 v23, v26, v27")
    a("v_lshlrev_b32 v1, 6, v1"); a("v_lshl_add_u32 v1, v12, 4, v1"); a("v_lshl_add_u32 v1, v11, 8, v1")
    a(f"s_lshl_b32 {sT0}, {sWL}, 9"); a(f"s_add_u32 {sT0}, {sT0}, {WS_Q:#x}")
    a("s_mov_b32 exec_lo, 0x33333333"); a("s_mov_b32 exec_hi, 0x33333333")
    a(f"buffer_store_dwordx4 v[20:23], v1, {WS}, {sT0} offen"); a(f"s_xor_b32 {sT0}, {sT0}, {Q_ALT:#x}")
    a(f"buffer_store_dwordx4 v[20:23], v1, {WS}, {sT0} offen sc1")
    a("s_mov_b64 exec, -1")
    stamp(1)
    lds_spin("v6", F_PROG, ge=2)
    a("v_lshlrev_b32 v1, 4, v13"); a("v_lshl_add_u32 v4, v12, 9, v1")
    a(f"s_lshl_b32 {sT0}, {sX}, 14"); a(f"s_lshl_b32 {sT1}, {sB}, 8"); a(f"s_add_u32 {sT0}, {sT0}, {sT1}"); a(f"s_add_u32 {sT0}, {sT0}, {WS_Q:#x}")
    a(f"s_add_u32 {sT1}, {sT0}, 4096"); a(f"s_add_u32 {sT2}, {sT0}, 8192"); a(f"s_add_u32 {sT3}, {sT0}, 12288")
    a(f"s_mov_b32 {sCNT}, 0")
    lab("L_qpoll")
    for u in range(8): a(f"buffer_load_dwordx4 {vr(64+4*u,4)}, v4, {WS}, {(sT0,sT1,sT2,sT3)[u>>1]} offen offset:{2048*(u&1)} sc1")
    bound()
    for r in (sT0, sT1, sT2, sT3): a(f"s_xor_b32 {r}, {r}, {Q_ALT:#x}")
    a("v_mov_b32 v32, 0"); a("v_mov_b32 v33, 0")
    a("s_waitcnt vmcnt(0)")
    for u in range(8):
        a(f"v_xor_b32 v34, v{64+4*u}, v2"); a(f"v_xor_b32 v35, v{65+4*u}, v21")
        a("v_or_b32 v32, v32, v34"); a("v_or_b32 v33, v33, v35")
    a("v_and_or_b32 v32, v33, -16, v32")
    a("v_cmp_ne_u32 vcc, 0, v32")
    a("s_and_b64 exec, exec, vcc"); a("s_cbranch_scc1 L_qpoll")
    a("s_mov_b64 exec, -1")
    a("v_lshlrev_b32 v1, 3, v0"); a(f"v_add_u32 v1, {L_QS:#x}, v1")
    for u in range(8): a(f"ds_write_b64 v1, {vr(66+4*u,2)} offset:{QP*u}")
    a("v_cmp_ne_u32 vcc, 0, v33")
    a("s_cmp_eq_u64 vcc, 0"); a(f"s_cselect_b32 {sSAME}, 2, 1"); a(f"v_mov_b32 v1, {sSAME}")
    a(f"ds_write_b32 v7, v1 offset:{F_QRDY}")
    for r in range(4): a(f"v_mov_b32 v{28+r}, -1")
    a("v_lshlrev_b32 v4, 8, v0")
    a(f"s_lshr_b32 {sT3}, {sWL}, 4"); a(f"s_lshl_b32 {sT3}, {sT3}, 14"); a(f"s_lshl4_add_u32 {sT3}, {sS}, {sT3}")
    a(f"s_add_u32 {sT3}, {sT3}, {WS_O:#x}")
    store_local(f"buffer_store_dwordx4 v[28:31], v4, {WS}, {sT3} offen")
    lab("L_qdone")
    lds_spin("v7", F_QRDY, sSAME)
    stamp(2)
    a("v_bfe_u32 v1, v0, 2, 1"); a("v_lshl_add_u32 v1, v11, 1, v1"); a(f"v_mul_u32_u24 v1, {QP}, v1")
    a("v_lshl_add_u32 v1, v12, 4, v1"); a(f"v_add_u32 v4, {L_QS:#x}, v1")
    for u in range(8): a(f"ds_read_b128 {vr(64+4*u,4)}, v4 offset:{64*u}")
    a(f"s_lshl_b32 s80, {sH}, 15")
    a("v_xor_b32 v1, v12, v13"); a("v_lshlrev_b32 v1, 4, v1"); a("v_lshl_add_u32 v1, v13, 9, v1"); a("v_add_u32 v16, s80, v1")
    for u in range(1, 4): a(f"v_xor_b32 v{16+u}, {64*u}, v16")
    lds_spin("v6", F_PROG, ge=8+window-1)
    stamp(3)
    seq = [(t, u) for u in range(8) for t in range(4)]
    def kread(k):
        t, u = seq[k]
        a(f"ds_read_b128 {vr(96+4*k,4)}, v{16+(u&3)} offset:{8192*t+256*(u>>2)}")
    for k in range(12): kread(k)
    for k in range(32):
        if k + 12 < 32: kread(k + 12)
        t, u = seq[k]
        a(f"s_waitcnt lgkmcnt({min(12, 31-k)})")
        mfma(20 + 4 * t, 64 + 4 * u, 96 + 4 * k, u == 0)
    a("s_mov_b32 vcc_lo, 0"); a("s_mov_b32 vcc_hi, -1")
    a("v_and_b32 v1, 1, v12"); a("v_lshlrev_b32 v8, 10, v1"); a("v_lshl_add_u32 v9, v1, 4, v6")
    a("v_lshlrev_b32 v1, 8, v1"); a("v_lshl_add_u32 v1, v11, 6, v1"); a("v_and_b32 v4, 12, v0"); a("v_add_u32 v1, v1, v4")
    a("v_lshrrev_b32 v4, 5, v0"); a("v_lshl_add_u32 v1, v4, 4, v1")
    a(f"s_lshl_b32 {sT0}, {sH}, 9"); a(f"s_add_u32 {sT0}, {sT0}, {L_PT:#x}"); a(f"v_add_u32 v4, {sT0}, v1")
    for j in range(4):
        a(f"v_cndmask_b32 v{20+j}, v{20+j}, v{24+j}, vcc"); a(f"v_cndmask_b32 v{28+j}, v{28+j}, v{32+j}, vcc")
    a("v_add_f32 v20, v20, v21"); a("v_add_f32 v22, v22, v23"); a("v_add_f32 v28, v28, v29"); a("v_add_f32 v30, v30, v31")
    a("v_add_f32 v20, v20, v22"); a("v_add_f32 v21, v28, v30")
    c = f2u(1.4426950408889634 / 16)
    a(f"v_mul_f32 v20, {c:#x}, v20"); a(f"v_mul_f32 v21, {c:#x}, v21")
    a("v_max_f32 v24, v20, v21")
    allreduce("v_max_f32", [24], [28], swaps=("v_permlane32_swap_b32",))
    a("v_sub_f32 v20, v20, v24"); a("v_sub_f32 v21, v21, v24")
    a("v_exp_f32 v20, v20"); a("v_exp_f32 v21, v21")
    a(f"ds_write_b32 v9, v24 offset:{F_M}")
    a("v_add_f32 v25, v20, v21")
    a("v_cvt_pk_bf16_f32 v20, v20, v20"); a("v_cvt_pk_bf16_f32 v21, v21, v21")
    a("ds_write_b32 v4, v20"); a("ds_write_b32 v4, v21 offset:32")
    a("s_waitcnt vmcnt(0)")
    a(f"ds_write_b32 v6, v5 offset:{F_PRDY}")
    allreduce("v_add_f32", [25], [28], swaps=("v_permlane32_swap_b32",))
    a("v_mov_b32 v22, v2"); a("v_mov_b32 v23, v3")
    a(f"s_lshr_b32 {sT0}, {sWL}, 4"); a(f"s_lshl_b32 {sT0}, {sT0}, 11"); a(f"s_lshl2_add_u32 {sT1}, {sS}, {sH}")
    a(f"s_lshl4_add_u32 {sT0}, {sT1}, {sT0}"); a(f"s_add_u32 {sT0}, {sT0}, {WS_ST:#x}")
    a("s_mov_b64 exec, 0x10001")
    store_local(f"buffer_store_dwordx4 v[22:25], v8, {WS}, {sT0} offen")
    a("s_mov_b64 exec, -1")
    stamp(4)
    srd(60, 24, 4096*448*2)
    def wo_prefetch():
        if wptrig > 40 or nowo: return
        if wptrig <= 32: lds_spin("v6", F_PROG, ge=8+wptrig)
        else:
            lds_spin("v7", F_DONE); gwait(kw)
        a(f"s_lshl2_add_u32 {sT0}, {sWL}, {sH}"); a(f"s_mul_i32 {sT0}, {sT0}, {28*128}")
        a("v_lshlrev_b32 v1, 7, v0"); a("s_mov_b64 exec, 0xfffffff")
        a(f"buffer_load_dword v220, v1, {WO}, {sT0} offen")
        a("s_mov_b64 exec, -1")
    a("s_mov_b32 m0, s80")
    a("v_lshrrev_b32 v8, 2, v0")
    a("v_lshlrev_b32 v1, 6, v10"); a("v_lshl_add_u32 v1, v11, 3, v1"); a("v_add_u32 v16, s80, v1")
    if touch:
        a(f"s_mul_i32 {sT0}, {sX}, {512*896}"); a(f"v_mul_u32_u24 v1, {512*896-128}, v0"); a("s_mov_b64 exec, 3")
        a(f"buffer_load_dword v219, v1, {WO}, {sT0} offen"); a("s_mov_b64 exec, -1")
    a(f"s_cmp_lt_u32 {sI}, {N_WO}"); a("s_cbranch_scc1 L_wo")
    srd(64, 28, 448*1792*2); srd(68, 30, 448*1792*2); srd(72, 32, 1792*448*2)
    if touch:
        a(f"v_mul_u32_u24 v1, {448*3584-128}, v0"); a("s_mov_b64 exec, 3")
        for k, m in enumerate((WG, WU, WD)): a(f"buffer_load_dword v{216+k}, v1, {m}, 0 offen")
        a("s_mov_b64 exec, -1")
    a(f"s_cmp_lt_u32 {sI}, {FIN0}"); a("s_cbranch_scc1 L_ffn")
    a("s_branch L_final")
    flush_far()

    page()
    lab("L_wo")
    lds_spin("v6", F_PROG, ge=8+strig)
    a(f"s_lshl_b32 {sT1}, {sI}, 6")
    a(f"s_cmp_eq_u32 {sX}, 0"); a(f"s_cselect_b32 {sT1}, {sT1}, 0x10000")
    if p8:
        a("v_bfe_u32 v1, v0, 2, 1"); a("v_mul_u32_u24 v1, 896, v1"); a("v_lshl_add_u32 v1, v11, 4, v1")
        a(f"buffer_load_dwordx4 v[52:55], v1, {X}, {sT1} offen")
    else:
        a("v_and_b32 v1, 1, v12"); a("v_mul_u32_u24 v1, 896, v1"); a("v_lshl_add_u32 v1, v13, 2, v1")
        a(f"buffer_load_dword v39, v1, {X}, {sT1} offen")
    a(f"s_lshr_b32 {sT1}, {sH}, 1"); a(f"s_lshl2_add_u32 {sT0}, {sX}, {sT1}"); a(f"s_lshl_b32 {sT0}, {sT0}, 10"); a(f"s_add_u32 {sT0}, {sT0}, {WS_ST:#x}")
    a(f"s_mov_b32 {sCNT}, 0")
    lab("L_stpoll")
    a(f"buffer_load_dwordx4 v[28:31], v15, {WS}, {sT0} offen sc1"); a(f"buffer_load_dwordx4 v[32:35], v15, {WS}, {sT0} offen offset:2048 sc1")
    bound()
    a("s_waitcnt vmcnt(0)")
    a("v_xor_b32 v28, v28, v2"); a("v_xor_b32 v29, v29, v3"); a("v_xor_b32 v32, v32, v2"); a("v_xor_b32 v33, v33, v3")
    a("v_or_b32 v28, v28, v29"); a("v_or3_b32 v28, v28, v32, v33")
    a("v_cmp_ne_u32 vcc, 0, v28")
    a("s_and_b64 exec, exec, vcc"); a("s_cbranch_scc1 L_stpoll")
    a("s_mov_b64 exec, -1")
    stamp(5)
    dpp("v_max_f32", 24, 30, "quad_perm:[1,0,3,2]"); dpp("v_max_f32", 25, 34, "quad_perm:[1,0,3,2]")
    dpp("v_max_f32", 24, 24, "quad_perm:[2,3,0,1]"); dpp("v_max_f32", 25, 25, "quad_perm:[2,3,0,1]")
    a("v_mov_b32 v26, v24"); a("v_mov_b32 v27, v25")
    allreduce("v_max_f32", [26, 27], [28, 29], rors=(8, 4))
    a("v_sub_f32 v30, v30, v26"); a("v_sub_f32 v34, v34, v27"); a("v_sub_f32 v24, v24, v26"); a("v_sub_f32 v25, v25, v27")
    a("v_exp_f32 v30, v30"); a("v_exp_f32 v34, v34"); a("v_exp_f32 v24, v24"); a("v_exp_f32 v25, v25")
    a("v_mul_f32 v31, v31, v30"); a("v_mul_f32 v35, v35, v34")
    allreduce("v_add_f32", [31, 35], [28, 29])
    a("v_rcp_f32 v31, v31"); a("v_rcp_f32 v35, v35")
    if p8:
        for j in range(4): a(f"v_lshlrev_b32 v{56+2*j}, 16, v{52+j}"); a(f"v_and_b32 v{57+2*j}, 0xffff0000, v{52+j}")
    else:
        a("v_lshlrev_b32 v38, 16, v39"); a("v_and_b32 v39, 0xffff0000, v39")
    a("v_mul_f32 v24, v24, v31"); a("v_mul_f32 v25, v25, v35")
    for bb in range(2):
        for j in range(4): a(f"v_mov_b32_dpp v{40+4*bb+j}, v{24+bb} row_newbcast:{4*j} row_mask:0xf bank_mask:0xf")
    a(f"s_lshl_b32 {sT2}, {sH}, 8"); a(f"s_add_u32 {sT2}, {sT2}, {L_RED2:#x}"); a("v_lshlrev_b32 v9, 2, v0"); a(f"v_add_u32 v36, {sT2}, v9")
    if p8:
        a("v_and_b32 v1, 7, v0"); a("v_lshlrev_b32 v37, 5, v1"); a(f"v_add_u32 v37, {L_RED2:#x}, v37")
        a("v_lshlrev_b32 v1, 4, v1"); a("v_lshrrev_b32 v9, 3, v0"); a("v_lshl_add_u32 v9, v9, 14, v1")
    else:
        a("v_and_b32 v1, 31, v0"); a("v_lshlrev_b32 v37, 3, v1"); a(f"v_add_u32 v37, {L_RED2:#x}, v37")
    a("v_mul_u32_u24 v17, 896, v8"); a("v_lshl_add_u32 v17, v11, 4, v17")
    a(f"s_lshl2_add_u32 {sT2}, {sX}, {sH}"); a(f"s_mul_i32 {sT2}, {sT2}, {128*896}")
    a(f"s_lshl_b32 {sT1}, {sI}, 6"); a(f"s_add_u32 {sT2}, {sT2}, {sT1}")
    a(f"s_lshl_b32 {sT3}, s2, 7"); a(f"s_add_u32 {sT3}, {sT3}, {WS_P:#x}")
    wo_prefetch()
    if wtrig <= 32: lds_spin("v7", F_PROG, ge=8+wtrig, four=24)
    else: lds_spin("v7", F_DONE)
    for k in range(8):
        dma("v17", WO, sT2)
        if k < 7: a(f"s_add_u32 {sT2}, {sT2}, {16*896}")
    a(f"s_lshl3_add_u32 {sT0}, {sX}, {sH}"); a(f"s_lshl_b32 {sT0}, {sT0}, 12"); a(f"s_add_u32 {sT0}, {sT0}, {WS_O:#x}")
    a(f"s_add_u32 {sT1}, {sT0}, 16384")
    def oloads(bs):
        for bb in bs:
            for u in range(4): a(f"buffer_load_dwordx4 {vr(96+16*bb+4*u,4)}, v15, {WS}, {(sT0, sT1)[bb]} offen offset:{1024*u} sc1")
    def oround(bs, mid=None):
        if osleep: a(f"s_sleep {osleep}")
        oloads(bs)
        bound()
        if mid: lab(mid)
        left = 4 * len(bs)
        for bb in bs:
            for u in range(4):
                left -= 1
                a(f"s_waitcnt vmcnt({left})")
                for t in range(2): mfma(20 + 8 * bb + 4 * t, 96 + 16 * bb + 4 * u, 64 + 8 * u + 4 * t, u == 0)
                maxchain(48 + bb, range(96 + 16 * bb + 4 * u, 100 + 16 * bb + 4 * u), acc=u > 0)
    if ofirst:
        lds_spin("v7", F_DONE, dst=sT2)
        stamp(7)
        oloads((0, 1))
    for u in range(4):
        a(f"s_waitcnt vmcnt({6-2*u+(8 if ofirst else 0)})")
        for t in range(2):
            a(f"ds_read_b64_tr_b16 {vr(64+8*u+4*t,2)}, v16 offset:{2048*u+32*t}")
            a(f"ds_read_b64_tr_b16 {vr(66+8*u+4*t,2)}, v16 offset:{2048*u+32*t+256}")
        if u == 2: a("s_waitcnt lgkmcnt(4)")
    stamp(6)
    a(f"s_mov_b32 {sCNT}, 0")
    if ofirst:
        a("s_waitcnt lgkmcnt(0)"); a("s_branch L_omid")
    else:
        lds_spin("v7", F_DONE, dst=sT2)
        stamp(7)
    lab("L_oboth")
    oround((0, 1), "L_omid")
    a("v_cmp_eq_u32 vcc, -1, v48"); a("v_cmp_eq_u32 s[26:27], -1, v49")
    a("s_cbranch_vccz L_o0ok")
    a("s_cmp_eq_u64 s[26:27], 0"); a("s_cbranch_scc0 L_oboth")
    lab("L_oonly0")
    oround((0,))
    a("v_cmp_eq_u32 vcc, -1, v48"); a("s_cbranch_vccnz L_oonly0")
    a("s_branch L_odone")
    lab("L_o0ok")
    a("s_cmp_eq_u64 s[26:27], 0"); a("s_cbranch_scc1 L_odone")
    lab("L_oonly1")
    oround((1,))
    a("v_cmp_eq_u32 vcc, -1, v49"); a("s_cbranch_vccnz L_oonly1")
    lab("L_odone")
    a("s_nop 3")
    stamp(8)
    for bb in range(2):
        for t in range(2):
            d = 20 + 8 * bb + 4 * t
            a(f"v_pk_mul_f32 {vr(d,2)}, {vr(d,2)}, {vr(40+4*bb,2)}")
    for bb in range(2):
        for t in range(2):
            d = 20 + 8 * bb + 4 * t
            a(f"v_pk_fma_f32 {vr(d,2)}, {vr(d+2,2)}, {vr(42+4*bb,2)}, {vr(d,2)}")
    for d in (20, 24, 28, 32): a(f"v_add_f32 v{d}, v{d}, v{d+1}")
    a("v_permlane32_swap_b32 v20, v28"); a("v_permlane32_swap_b32 v24, v32")
    a("v_add_f32 v20, v20, v28"); a("v_add_f32 v24, v24, v32")
    a("v_permlane16_swap_b32 v20, v24"); a("v_add_f32 v20, v20, v24")
    a("ds_write_b32 v36, v20")
    a("s_mov_b64 exec, 1")
    a(f"ds_add_rtn_u32 v1, v7, v5 offset:{F_CNT2}")
    if p8:
        a("s_mov_b64 exec, -1")
        for z in range(2):
            for k in range(4): a(f"ds_read_b128 {vr(128+16*z+4*k,4)}, v37 offset:{256*k+16*z}")
        a("s_waitcnt lgkmcnt(8)")
        a(f"v_readfirstlane_b32 {sT0}, v1")
        a(f"s_cmp_eq_u32 {sT0}, 3"); a("s_cbranch_scc0 L_exitW")
        for z in range(2):
            b0 = 128 + 16 * z
            a(f"s_waitcnt lgkmcnt({4-4*z})")
            for j in (0, 2):
                a(f"v_pk_add_f32 {vr(b0+j,2)}, {vr(b0+j,2)}, {vr(b0+4+j,2)}")
                a(f"v_pk_add_f32 {vr(b0+8+j,2)}, {vr(b0+8+j,2)}, {vr(b0+12+j,2)}")
            for j in (0, 2): a(f"v_pk_add_f32 {vr(b0+j,2)}, {vr(b0+j,2)}, {vr(56+4*z+j,2)}")
            for j in (0, 2): a(f"v_pk_add_f32 {vr(b0+j,2)}, {vr(b0+j,2)}, {vr(b0+8+j,2)}")
            a(f"v_cvt_pk_bf16_f32 v{20+2*z}, v{b0}, v{b0+1}"); a(f"v_cvt_pk_bf16_f32 v{21+2*z}, v{b0+2}, v{b0+3}")
            a(f"v_min_u32 v{20+2*z}, -2, v{20+2*z}"); a(f"v_min_u32 v{21+2*z}, -2, v{21+2*z}")
        a(f"buffer_store_dwordx4 v[20:23], v9, {WS}, {sT3} offen sc1")
    else:
        a("s_mov_b32 exec_lo, -1")
        for k in range(4): a(f"ds_read_b64 {vr(22+2*k,2)}, v37 offset:{256*k}")
        a("s_waitcnt lgkmcnt(4)")
        a(f"v_readfirstlane_b32 {sT0}, v1")
        a(f"s_cmp_eq_u32 {sT0}, 3"); a("s_cbranch_scc0 L_exitW")
        a("s_waitcnt lgkmcnt(0)")
        a("v_pk_add_f32 v[22:23], v[22:23], v[24:25]"); a("v_pk_add_f32 v[26:27], v[26:27], v[28:29]")
        a("v_pk_add_f32 v[22:23], v[22:23], v[38:39]"); a("v_pk_add_f32 v[22:23], v[22:23], v[26:27]")
        a("v_cvt_pk_bf16_f32 v20, v22, v23"); a("v_min_u32 v20, -2, v20")
        a(f"buffer_store_dword v20, v9, {WS}, {sT3} offen sc1")
    stamp(9)
    lab("L_exitW")
    a("s_branch L_exit" if stamps or pwg >= 0 else "s_endpgm")

    page()
    lab("L_ffn")
    a("v_and_b32 v1, 7, v0"); a("v_lshlrev_b32 v1, 5, v1"); a("v_bfe_u32 v4, v0, 3, 2"); a("v_lshl_add_u32 v1, v4, 2, v1")
    a(f"v_add_u32 v1, {sH}, v1"); a("v_lshlrev_b32 v4, 4, v1")
    tagpoll("v4")
    a("v_lshlrev_b32 v48, 6, v13"); a("v_lshl_add_u32 v48, v12, 4, v48")
    a(f"s_cmp_ge_u32 {sH}, 2"); a(f"s_cselect_b32 {sT0}, 0x10000000, 0"); a(f"v_add_u32 v49, {sT0}, v48")
    a(f"s_lshl_b32 {sT0}, {sH}, 10"); a(f"s_add_u32 {sT0}, {sT0}, {L_R3:#x}"); a(f"v_add_u32 v50, {sT0}, v15")
    a(f"v_add_u32 v51, {L_R3:#x}, v15")
    a(f"s_lshl2_add_u32 {sT0}, {sH}, {L_G:#x}"); a(f"v_add_u32 v68, {sT0}, v15"); a(f"v_add_u32 v69, {L_G:#x}, v15")
    a(f"s_lshl2_add_u32 {sT0}, {sH}, {L_R3S:#x}"); a("v_lshrrev_b32 v1, 5, v0"); a("v_lshlrev_b32 v1, 4, v1")
    a(f"v_add_u32 v52, {sT0}, v1"); a(f"v_add_u32 v53, {L_R3S:#x}, v1")
    a(f"s_lshl_b32 {sT0}, {sH}, 7"); a(f"s_add_u32 {sT0}, {sT0}, {L_HH:#x}"); a("v_lshlrev_b32 v1, 1, v0"); a(f"v_add_u32 v54, {sT0}, v1")
    a("v_lshrrev_b32 v1, 3, v13"); a("v_lshlrev_b32 v1, 6, v1"); a("v_lshl_add_u32 v1, v12, 4, v1"); a(f"v_add_u32 v1, {sT0}, v1")
    a("v_and_b32 v4, 7, v0"); a(f"v_mov_b32 v55, {L_FL + F_ZERO:#x}")
    for t in range(8):
        a(f"v_cmp_eq_u32 vcc, {t}, v4"); a(f"v_cndmask_b32 v{56+t}, v55, v1, vcc")
    for r in range(4): a(f"v_mov_b32 v{40+r}, 0x3f803f80")
    a(f"s_lshl_b32 s16, {sH}, 10"); a(f"s_add_u32 s16, s16, {WS_P:#x}")
    if p8: a(f"s_lshl_b32 {sT0}, {sX}, 14"); a(f"s_add_u32 s16, s16, {sT0}")
    for u in range(1, 4): a(f"s_add_u32 s{16+u}, s16, {4096*u}")
    a(f"s_mul_i32 {sT1}, {PHI}, 3584"); a(f"s_lshl_b32 {sT2}, {sH}, 10"); a(f"s_add_u32 {sT1}, {sT1}, {sT2}"); a(f"s_add_u32 s21, {sT1}, {WS_F:#x}")
    a(f"s_cmp_eq_u32 {sH}, 3"); a("s_cselect_b32 s20, 0, -1")
    a("s_mov_b32 s22, 0xaaaaaaaa"); a("s_mov_b32 s23, 0xaaaaaaaa")
    a("s_mov_b32 s24, 0xffff0000"); a("s_mov_b32 s25, 0xffff0000")
    a("s_mov_b32 s26, 0xff00ff00"); a("s_mov_b32 s27, 0xff00ff00")
    a("v_mul_u32_u24 v9, 3584, v8"); a("v_lshl_add_u32 v9, v11, 4, v9")
    a("v_xor_b32 v1, v12, v13"); a("v_mul_u32_u24 v17, 896, v12"); a("v_lshl_add_u32 v17, v1, 4, v17")
    a(f"s_cmp_eq_u32 {sH}, 3"); a(f"s_cselect_b32 {sT0}, 8, 16"); a(f"v_cmp_gt_u32 vcc, {sT0}, v13")
    a("v_mov_b32 v1, 0x10000000"); a("v_cndmask_b32 v17, v1, v17, vcc")
    a("v_lshlrev_b32 v1, 8, v10"); a("v_lshl_add_u32 v1, v11, 6, v1"); a("v_bfe_u32 v4, v0, 2, 2"); a("v_lshl_add_u32 v1, v4, 4, v1")
    a("v_add_u32 v64, s80, v1")
    for q in range(1, 4): a(f"v_xor_b32 v{64+q}, {16*q}, v64")
    a(f"s_mul_i32 s28, {sH}, {32*3584}"); a(f"s_lshl_b32 {sT1}, {PHI}, 6"); a(f"s_add_u32 s28, s28, {sT1}")
    a(f"s_add_u32 s29, s28, {16*3584}")
    a(f"s_mul_i32 s30, {PHI}, {32*896}"); a(f"s_lshl_b32 {sT1}, {sH}, 8"); a(f"s_add_u32 s30, s30, {sT1}")
    a(f"s_sub_u32 {sT1}, {sI}, {FFN0}"); a(f"s_lshl3_add_u32 {sT1}, {sX}, {sT1}"); a(f"s_lshl2_add_u32 {sT1}, {sT1}, {sH}")
    a(f"s_lshl2_add_u32 s33, {sT1}, {WS_HN:#x}")
    a(f"s_mov_b32 {sT2}, 0")
    wo_prefetch()
    gu = ((WG, "s28"), (WG, "s29"), (WU, "s28"), (WU, "s29"))
    if early:
        lds_spin("v7", F_PROG, ge=40+vtrig, four=24)
        for m, so in gu[:early]: dma("v9", m, so)
    lds_spin("v7", F_DONE)
    gwait(kp)
    stamp(5)
    if early: a("s_branch L_gumid")
    lab("L_guloop")
    for m, so in gu[:early]: dma("v9", m, so)
    lab("L_gumid")
    for m, so in gu[early:]: dma("v9", m, so)
    a(f"s_add_u32 s28, s28, {128*3584}"); a(f"s_add_u32 s29, s29, {128*3584}")
    a(f"s_add_u32 {sT2}, {sT2}, 1"); a(f"s_cmp_lt_u32 {sT2}, 4"); a("s_cbranch_scc1 L_guloop")
    for k in range(8):
        dma("v17", WD, "s30")
        if k < 7: a(f"s_add_u32 s30, s30, {4*896}")
    pf_ = pfirst and not pskip and pdepth == 1
    def ploads():
        for u in range(4): a(f"buffer_load_dwordx4 {vr(176+4*u,4)}, v{49 if u == 3 else 48}, {WS}, s{16+u} offen sc1")
    for u in range(4):
        a(f"s_waitcnt vmcnt({20-4*u})")
        if u == 3 and pf_: ploads()
        for t in range(4):
            a(f"ds_read_b64_tr_b16 {vr(80+16*u+4*t,2)}, v16 offset:{4096*u+2048*(t>>1)+32*(t&1)}")
            a(f"ds_read_b64_tr_b16 {vr(82+16*u+4*t,2)}, v16 offset:{4096*u+2048*(t>>1)+32*(t&1)+256}")
        a("s_waitcnt lgkmcnt(0)")
        for t in range(4): mfma(20 + 4 * t, 40, 80 + 16 * u + 4 * t, u == 0)
    a(f"s_waitcnt vmcnt({4 if pf_ else 0})")
    stamp(6)
    for t in range(8):
        a(f"ds_read_b64_tr_b16 {vr(144+4*t,2)}, v{64+(t>>1)} offset:{16384+8*(t&1)}")
        a(f"ds_read_b64_tr_b16 {vr(146+4*t,2)}, v{64+(t>>1)} offset:{16384+8*(t&1)+1024}")
        if t == 5: a("s_waitcnt lgkmcnt(4)")
    a("v_cndmask_b32 v46, v20, v24, s[24:25]"); a("v_cndmask_b32 v47, v28, v32, s[24:25]")
    stamp(7)
    if pskip:
        spec = 0
        a(f"s_mov_b32 {sCNT}, 0")
        for u in range(4): a(f"s_mov_b64 s[{84+2*u if not stamps else 36+0}:{85+2*u if not stamps else 37}], -1") if False else None
        M = ["s[34:35]", "s[36:37]", "s[38:39]", "s[28:29]"]
        for m in M: a(f"s_mov_b64 {m}, -1")
        lab("L_ppoll")
        for u in range(4):
            a(f"s_mov_b64 exec, {M[u]}"); a(f"s_cbranch_execz L_ps{u}")
            a(f"buffer_load_dwordx4 {vr(176+4*u,4)}, v{49 if u == 3 else 48}, {WS}, s{16+u} offen sc1")
            lab(f"L_ps{u}")
        a("s_mov_b64 exec, -1")
        bound()
        a("s_waitcnt vmcnt(0)")
        for u in range(4): maxchain(72 + u, range(176 + 4 * u, 180 + 4 * u))
        for u in range(4): a(f"v_cmp_eq_u32 {M[u]}, -1, v{72+u}")
        a("v_max3_u32 v1, v72, v73, v74"); a("v_max_u32 v1, v1, v75"); a("v_cmp_eq_u32 vcc, -1, v1")
        a("s_cbranch_vccnz L_ppoll")
    elif pdepth > 1:
        spec = 0
        for r in range(176, 192): a(f"v_mov_b32 v{r}, -1")
        a(f"s_mov_b32 {sCNT}, 0")
        lab("L_ppoll")
        for u in range(4): a(f"buffer_load_dwordx4 {vr(176+4*u,4)}, v{49 if u == 3 else 48}, {WS}, s{16+u} offen sc1")
        bound()
        a(f"s_waitcnt vmcnt({4*(pdepth-1)})")
        for rep_ in range(psleep + 1):
            maxchain(1, range(176, 192))
            a("v_cmp_eq_u32 vcc, -1, v1")
            a("s_and_b64 exec, exec, vcc")
            a("s_cbranch_scc0 L_pok" if rep_ < psleep else "s_cbranch_scc1 L_ppoll")
        lab("L_pok")
        a("s_mov_b64 exec, -1")
    else:
        a(f"s_mov_b32 {sCNT}, 0")
        if pf_: a("s_branch L_pmid")
        lab("L_ppoll")
        ploads()
        bound()
        lab("L_pmid")
        for u in range(4):
            a(f"s_waitcnt vmcnt({3-u})")
            if spec: mfma(196, 176 + 4 * u, 40, u == 0)
            maxchain(1, range(176 + 4 * u, 180 + 4 * u), acc=u > 0)
        if spec:
            for t in range(4): mfma(20 + 4 * t, 176, 80 + 4 * t, True)
        a("v_cmp_eq_u32 vcc, -1, v1")
        if psleep:
            a("s_and_b64 exec, exec, vcc"); a("s_cbranch_scc0 L_pok"); a(f"s_sleep {psleep}"); a("s_branch L_ppoll"); lab("L_pok")
        else:
            a("s_and_b64 exec, exec, vcc"); a("s_cbranch_scc1 L_ppoll")
        a("s_mov_b64 exec, -1")
    stamp(10)
    if not spec:
        for u in range(4): mfma(196, 176 + 4 * u, 40, u == 0)
    for u in range(1 if spec else 0, 4):
        for t in range(4):
            mfma(20 + 4 * t, 176 + 4 * u, 80 + 16 * u + 4 * t, u == 0)
            if (u, t) == (2, 0): a("v_pk_add_f32 v[196:197], v[196:197], v[198:199]")
            if (u, t) == (2, 2): a("v_permlane32_swap_b32 v196, v197")
            if (u, t) == (2, 3): a("v_add_f32 v196, v196, v197")
            if (u, t) == (3, 0): a("v_mov_b32 v197, v196")
            if (u, t) == (3, 2): a("v_permlane16_swap_b32 v196, v197")
            if (u, t) == (3, 3): a("v_add_f32 v196, v196, v197")
    for u in range(4):
        mfma(192, 176 + 4 * u, 176 + 4 * u, u == 0)
        if u == 0: a("ds_write_b32 v52, v196")
    for t in range(4): a(f"v_pk_add_f32 {vr(20+4*t,2)}, {vr(20+4*t,2)}, {vr(22+4*t,2)}")
    for t in range(4): a(f"v_permlane32_swap_b32 v{20+4*t}, v{21+4*t}")
    for t in range(4): a(f"v_add_f32 v{20+4*t}, v{20+4*t}, v{21+4*t}")
    a("v_pk_add_f32 v[192:193], v[192:193], v[194:195]")
    a("v_permlane16_swap_b32 v20, v24"); a("v_permlane16_swap_b32 v28, v32")
    a("v_add_f32 v44, v20, v24"); a("v_add_f32 v45, v28, v32")
    a("ds_write_b128 v50, v[44:47]")
    a("v_cndmask_b32 v192, v192, v193, s[22:23]")
    a("ds_write_b32 v68, v192")
    a("s_waitcnt lgkmcnt(0)")
    a("s_barrier")
    a("ds_read_b128 v[196:199], v53")
    for w in range(4): a(f"ds_read_b128 {vr(20+4*w,4)}, v51 offset:{1024*w}")
    a("ds_read_b128 v[192:195], v69")
    a("s_waitcnt lgkmcnt(5)")
    a("v_pk_add_f32 v[196:197], v[196:197], v[198:199]"); a("v_add_f32 v196, v196, v197")
    a(f"v_mul_f32 v70, {f2u(1/448):#x}, v196")
    a("s_waitcnt lgkmcnt(3)")
    for j in (0, 2): a(f"v_pk_add_f32 {vr(20+j,2)}, {vr(20+j,2)}, {vr(24+j,2)}")
    a("s_waitcnt lgkmcnt(1)")
    for j in (0, 2): a(f"v_pk_add_f32 {vr(28+j,2)}, {vr(28+j,2)}, {vr(32+j,2)}")
    for j in (0, 2): a(f"v_pk_add_f32 {vr(20+j,2)}, {vr(20+j,2)}, {vr(28+j,2)}")
    a("v_fma_f32 v20, -v70, v22, v20"); a("v_fma_f32 v21, -v70, v23, v21")
    a("v_mul_f32 v20, v20, v21")
    a("v_cvt_pk_bf16_f32 v20, v20, v20")
    a("ds_write_b16 v54, v20")
    for t in range(8): a(f"ds_read_b128 {vr(96+4*t,4)}, v{56+t}")
    if hint and hpos == 2:
        a("s_mov_b64 exec, 1"); store_local(f"buffer_store_dword v2, v14, {WS}, s33 offen"); a("s_mov_b64 exec, -1")
    a("s_waitcnt lgkmcnt(9)")
    a("v_pk_add_f32 v[192:193], v[192:193], v[194:195]"); a("v_add_f32 v192, v192, v193")
    a("v_readlane_b32 s28, v70, 0"); a("v_readlane_b32 s29, v70, 32")
    dpp("v_add_f32", 192, 192, "quad_perm:[2,3,0,1]")
    a("v_mov_b32 v71, s28"); a("v_mov_b32 v72, s29")
    dpp("v_add_f32", 192, 192, "row_ror:4")
    a("v_cndmask_b32 v71, v71, v72, s[26:27]")
    extra = [["dpp"], ["v_mov_b32 v193, v192"], ["v_permlane16_swap_b32 v192, v193", "v_add_f32 v192, v192, v193"],
             ["v_mov_b32 v193, v192"], ["v_permlane32_swap_b32 v192, v193", "v_add_f32 v192, v192, v193"],
             ["v_mov_b32_dpp v193, v192 quad_perm:[1,1,1,1] row_mask:0xf bank_mask:0xf", "v_mov_b32_dpp v192, v192 quad_perm:[0,0,0,0] row_mask:0xf bank_mask:0xf"],
             ["v_cndmask_b32 v192, v192, v193, s[26:27]", f"v_mul_f32 v192, {f2u(1/448):#x}, v192"],
             ["v_fma_f32 v192, -v71, v71, v192", "v_max_f32 v192, 0, v192"]]
    for t in range(8):
        a(f"s_waitcnt lgkmcnt({7-t})")
        mfma(20, 144 + 4 * t, 96 + 4 * t, t == 0)
        for e in extra[t]:
            if e == "dpp": dpp("v_add_f32", 192, 192, "row_ror:8")
            else: a(e)
    a(f"v_add_f32 v192, {f2u(1e-5):#x}, v192"); a("v_rcp_f32 v192, v192")
    a("s_mov_b32 exec_hi, s20")
    for j in range(4): a(f"v_mul_f32 v{20+j}, v{20+j}, v192")
    for j in range(4): a(f"v_min_u32 v{20+j}, -2, v{20+j}")
    a(f"buffer_store_dwordx4 v[20:23], v15, {WS}, s21 offen sc1")
    if hint and hpos == 1:
        a("s_mov_b64 exec, 1"); store_local(f"buffer_store_dword v2, v14, {WS}, s33 offen")
    stamp(11)
    a("s_branch L_exit" if stamps or pwg >= 0 else "s_endpgm")
    flush_far()

    page()
    lab("L_final")
    a(f"s_sub_u32 {sT1}, {sI}, {FIN0}"); a(f"s_lshl2_add_u32 {sT1}, {sT1}, {sH}")
    a(f"s_mul_i32 {sT2}, {sT1}, {30 if nodup else 41}")
    if nodup: a(f"s_add_u32 {sT2}, {sT2}, 512")
    a(f"v_add_u32 v1, {sT2}, v0"); a("v_min_u32 v1, 1791, v1")
    a("v_lshrrev_b32 v4, 2, v1"); a("v_mul_u32_u24 v4, 3584, v4"); a("v_and_b32 v1, 3, v1"); a("v_lshl_add_u32 v4, v1, 7, v4")
    a(f"s_mul_i32 {sT2}, {sT1}, 36"); a(f"v_add_u32 v1, {sT2}, v0"); a("v_min_u32 v1, 1567, v1"); a("v_lshlrev_b32 v9, 7, v1")
    a(f"s_mul_i32 {sT2}, {sX}, 448"); a(f"s_and_b32 {sT2}, {sT2}, -128"); a(f"s_mul_i32 {sT3}, {sX}, {224*896}")
    wo_prefetch()
    if ftrig <= 32: lds_spin("v7", F_PROG, ge=8+ftrig+vtrig, four=24)
    else:
        lds_spin("v7", F_DONE); gwait(kf)
    a("s_mov_b32 exec_hi, 0x1ff")
    if nodup: a("s_mov_b64 exec, 0x3fffffff")
    if not nofw: a(f"buffer_load_dword v60, v4, {WG}, {sT2} offen"); a(f"buffer_load_dword v61, v4, {WU}, {sT2} offen")
    a("s_mov_b64 exec, -1")
    if ftrig <= 32: lds_spin("v7", F_DONE)
    gwait(kd)
    a("s_mov_b32 exec_hi, 0xf")
    if not nofw: a(f"buffer_load_dword v63, v9, {WD}, {sT3} offen")
    a("s_mov_b64 exec, -1")
    a(f"s_cmp_lt_u32 {sI}, {REF0}"); a("s_cbranch_scc1 L_fin1")
    if refp:
        a(f"s_cmp_eq_u32 {sH}, 0"); a("s_cbranch_scc0 L_exit")
        a(f"s_sub_u32 {sT0}, {sI}, {REF0}")
        if p8: a(f"s_lshl3_add_u32 {sT0}, {sX}, {sT0}")
        a(f"s_lshl_b32 {sT0}, {sT0}, 11"); a(f"s_add_u32 {sT0}, {sT0}, {WS_P:#x}")
        a("v_lshlrev_b32 v4, 7, v0"); a("s_mov_b64 exec, 0xffff")
        refresher("v4", sT0)
    else: a("s_branch L_exit")
    lab("L_fin1")
    a(f"s_cmp_lt_u32 {sX}, 7"); a("s_cbranch_scc0 L_exit")
    a(f"s_lshl2_add_u32 {sT0}, {sX}, {sI}"); a(f"s_sub_u32 s80, {sT0}, {FIN0}")
    a(f"s_lshl_b32 s16, s80, 7"); a(f"s_add_u32 s16, s16, {WS_F:#x}")
    a(f"s_cmp_eq_u32 {sH}, 0"); a("s_cbranch_scc1 L_fin2")
    if reff:
        a(f"s_cmp_eq_u32 {sH}, 1"); a("s_cbranch_scc0 L_exit")
        a("v_mul_u32_u24 v4, 3584, v0")
        lds_spin("v7", F_DONE, ge=2)
        a("s_mov_b32 exec_hi, 0xffffff")
        refresher("v4", "s16")
    else: a("s_branch L_exit")
    lab("L_fin2")
    srd(76, 34, 2*448*2)
    a(f"s_and_b32 {sT1}, s80, 1"); a(f"s_lshr_b32 {sT2}, s80, 1")
    a("v_lshrrev_b32 v8, 3, v0"); a("v_and_b32 v9, 7, v0")
    a(f"v_add_u32 v1, {FFN0}, v8"); a(f"v_mov_b32 v4, {sT2}"); a("v_cmp_eq_u32 vcc, 7, v8"); a("v_cndmask_b32 v1, v1, v4, vcc")
    a("v_lshl_add_u32 v1, v9, 5, v1"); a("v_lshlrev_b32 v4, 4, v1")
    a("v_lshlrev_b32 v10, 3, v9"); a("v_lshl_add_u32 v11, v8, 7, v10"); a("v_lshl_add_u32 v10, v12, 1, v10")
    a("v_mul_u32_u24 v8, 3584, v8"); a("v_lshl_add_u32 v9, v9, 4, v8")
    a(f"s_mul_i32 s23, {sT1}, 896"); a(f"s_lshl_b32 {sT3}, {sT2}, 6"); a(f"s_add_u32 s23, s23, {sT3}")
    a(f"buffer_load_ushort v16, v10, {OUT}, s23 offen")
    a(f"s_lshl_b32 s24, {sT2}, 10"); a(f"s_lshl_b32 {sT3}, {sT1}, 6"); a(f"s_add_u32 s24, s24, {sT3}"); a(f"s_add_u32 s24, s24, {WS_P:#x}")
    if p8: a(f"s_lshl_b32 {sT3}, {sX}, 14"); a(f"s_add_u32 s24, s24, {sT3}")
    for u in range(1, 7): a(f"s_add_u32 s{16+u}, s16, {8*3584*u}")
    tagpoll("v4")
    stamp(7)
    poll([f"buffer_load_dwordx2 v[24:25], v11, {WS}, s24 offen"], [24, 25], sleep=rsl)
    a("v_mov_b32 v1, 2"); a(f"ds_write_b32 v7, v1 offset:{F_DONE}")
    a("s_cmp_eq_u32 s80, 0"); a("s_cbranch_scc0 L_noep")
    a("s_mov_b64 exec, 1"); a(f"buffer_store_dwordx2 v[2:3], v14, {WS}, 0 offen sc1"); a("s_mov_b64 exec, -1")
    lab("L_noep")
    a("v_lshlrev_b32 v56, 16, v24"); a("v_and_b32 v57, 0xffff0000, v24"); a("v_lshlrev_b32 v58, 16, v25"); a("v_and_b32 v59, 0xffff0000, v25")
    stamp(10)
    if hint:
        a(f"s_lshl_b32 {sT0}, {sX}, 7"); a(f"s_add_u32 {sT0}, {sT0}, {WS_HN:#x}"); a("v_lshlrev_b32 v4, 2, v0")
        a("s_mov_b64 exec, 0xfffffff"); a(f"s_mov_b32 {sCNT}, 0")
        lab("L_hpoll")
        a(f"buffer_load_dword v1, v4, {WS}, {sT0} offen sc1")
        bound()
        a("s_waitcnt vmcnt(0)")
        if hcnt == 28:
            a("v_cmp_ne_u32 vcc, v1, v2"); a("s_cbranch_vccnz L_hpoll")
        else:
            a("v_cmp_eq_u32 vcc, v1, v2"); a(f"s_bcnt1_i32_b32 {sT1}, vcc_lo"); a(f"s_cmp_lt_u32 {sT1}, {hcnt}"); a("s_cbranch_scc1 L_hpoll")
        a("s_mov_b64 exec, -1")
    if fdelay: a(f"s_sleep {fdelay}")
    a(f"s_mov_b32 {sCNT}, 0")
    lab("L_fpoll")
    for u in range(7): a(f"buffer_load_dwordx4 {vr(24+4*u,4)}, v9, {WS}, s{16+u} offen sc1")
    bound()
    for u in range(7):
        a(f"s_waitcnt vmcnt({6-u})")
        maxchain(1, range(24 + 4 * u, 28 + 4 * u), acc=u > 0)
        for j in (0, 2): a(f"v_pk_add_f32 {vr(20+j,2)}, {vr((56 if u == 0 else 20)+j,2)}, {vr(24+4*u+j,2)}")
    a("v_cmp_eq_u32 vcc, -1, v1")
    if fsleep:
        a("s_and_b64 exec, exec, vcc"); a("s_cbranch_scc0 L_fok"); a(f"s_sleep {fsleep}"); a("s_branch L_fpoll"); lab("L_fok")
    else:
        a("s_and_b64 exec, exec, vcc"); a("s_cbranch_scc1 L_fpoll")
    a("s_mov_b64 exec, -1")
    stamp(12)
    a("v_permlane32_swap_b32 v20, v22"); a("v_permlane32_swap_b32 v21, v23")
    a("v_add_f32 v20, v20, v22"); a("v_add_f32 v21, v21, v23")
    a("v_permlane16_swap_b32 v20, v21"); a("v_add_f32 v20, v20, v21")
    dpp("v_add_f32", 20, 20, "row_ror:8")
    a("s_mov_b32 exec_lo, 0x00ff00ff"); a("s_mov_b32 exec_hi, 0x00ff00ff")
    a("v_cvt_pk_bf16_f32 v20, v20, v20")
    a(f"buffer_store_short v20, v10, {OUT}, s23 offen")
    lab("L_exit")
    if stamps:
        a("s_mov_b64 exec, -1")
        a("s_waitcnt vmcnt(0) lgkmcnt(0)")
        a("s_memrealtime s[100:101]"); a("s_waitcnt lgkmcnt(0)"); a("s_mov_b32 s98, s100"); a("s_mov_b32 s99, s82")
        a(f"s_cmp_lt_u32 {sWAVE}, 4"); a("s_cbranch_scc0 L_dump")
        a(f"s_sub_u32 {sT0}, {sI}, {FFN0}"); a(f"s_cmp_lt_u32 {sT0}, 7"); a("s_cbranch_scc0 L_dump")
        a("s_barrier")
        lab("L_dump")
        a("s_sleep 32"); a("s_memrealtime s[100:101]"); a("s_waitcnt lgkmcnt(0)"); a("s_sub_u32 s100, s100, s82")
        a("s_cmp_lt_u32 s100, 2500"); a("s_cbranch_scc1 L_dump")
        for k in range(16): a(f"v_mov_b32 v{20+k}, s{84+k}")
        a(f"s_lshl_b32 {sT0}, s2, 3"); a(f"s_add_u32 {sT0}, {sT0}, {sWAVE}"); a(f"s_lshl_b32 {sT0}, {sT0}, 6"); a(f"s_add_u32 {sT0}, {sT0}, {WS_STAMP:#x}")
        a("v_mov_b32 v1, 0"); a("s_mov_b64 exec, 1")
        for k in range(4): a(f"buffer_store_dwordx4 {vr(20+4*k,4)}, v1, {WS}, {sT0} offen offset:{16*k} sc1")
    if pa >= 0:
        a("s_cmp_eq_u32 s2, 255"); a("s_cbranch_scc0 L_end")
        a(f"s_cmp_eq_u32 {sWAVE}, 7"); a("s_cbranch_scc0 L_end")
        lab("L_pr0")
        a("s_memrealtime s[98:99]"); a("s_waitcnt lgkmcnt(0)"); a("s_sub_u32 s98, s98, s82")
        a("s_cmp_lt_u32 s98, 3500"); a("s_cbranch_scc1 L_pr0")
        a(f"s_mov_b32 s10, {WS_STAMP + 4*pa:#x}"); a(f"s_mov_b32 s11, {WS_STAMP + 4*pb:#x}")
        a(f"buffer_load_dword v20, v1, {WS}, s10 offen sc1"); a(f"buffer_load_dword v21, v1, {WS}, s11 offen sc1")
        a("s_waitcnt vmcnt(0)"); a("v_sub_u32 v20, v20, v21"); a("v_readfirstlane_b32 s10, v20")
        a("s_add_u32 s10, s10, 200"); a("s_and_b32 s10, s10, 0xfff"); a("s_lshl_b32 s10, s10, 3"); a("s_add_u32 s10, s10, 4000")
        lab("L_pr1")
        a("s_memrealtime s[98:99]"); a("s_waitcnt lgkmcnt(0)"); a("s_sub_u32 s98, s98, s82")
        a("s_cmp_lt_u32 s98, s10"); a("s_cbranch_scc1 L_pr1")
    if pwg >= 0:
        a(f"s_cmp_eq_u32 s2, {pwg}"); a("s_cbranch_scc0 L_end")
        a(f"s_cmp_eq_u32 {sWAVE}, {pwave}"); a("s_cbranch_scc0 L_end")
        if padto: a(f"s_mov_b32 s10, {padto}")
        else:
            a("s_waitcnt vmcnt(0)"); a("s_memrealtime s[98:99]"); a("s_waitcnt lgkmcnt(0)")
            a(f"s_sub_u32 s10, s98, s82"); a("s_and_b32 s10, s10, 0xfff"); a("s_lshl_b32 s10, s10, 3")
        lab("L_prl")
        a("s_memrealtime s[98:99]"); a("s_waitcnt lgkmcnt(0)"); a("s_sub_u32 s98, s98, s82")
        a("s_cmp_lt_u32 s98, s10"); a("s_cbranch_scc1 L_prl")
    lab("L_end")
    a("s_endpgm")
    body = pad(L)
    body += ['.section .rodata,"a"', ".p2align 6", f".amdhsa_kernel {NAME}_kernel",
             "  .amdhsa_next_free_vgpr 224", "  .amdhsa_next_free_sgpr 102", "  .amdhsa_accum_offset 224",
             "  .amdhsa_group_segment_fixed_size 0", "  .amdhsa_kernarg_size 96", "  .amdhsa_user_sgpr_count 2",
             "  .amdhsa_user_sgpr_kernarg_segment_ptr 1", "  .amdhsa_system_sgpr_workgroup_id_x 1",
             "  .amdhsa_float_denorm_mode_32 3", ".end_amdhsa_kernel"]
    return "\n".join(body) + "\n"

if __name__ == "__main__":
    kw = {}
    for arg in sys.argv[2:]:
        k, v = arg.split("="); kw[k] = int(v)
    open(sys.argv[1], "w").write(gen(**kw))
```

```python
import re

def regs_of(tok):
    tok = tok.strip()
    neg = tok.lstrip("-|").rstrip("|")
    m = re.fullmatch(r"([vsa])\[(\d+):(\d+)\]", neg)
    if m: return [(m.group(1), i) for i in range(int(m.group(2)), int(m.group(3)) + 1)]
    m = re.fullmatch(r"([vsa])(\d+)", neg)
    if m: return [(m.group(1), int(m.group(2)))]
    if neg == "vcc": return [("s", 106), ("s", 107)]
    if neg == "vcc_lo": return [("s", 106)]
    if neg == "vcc_hi": return [("s", 107)]
    if neg == "exec": return [("s", 126), ("s", 127)]
    if neg == "m0": return [("s", 124)]
    return []

TRANS = ("v_exp_", "v_log_", "v_rcp_", "v_rsq_", "v_sqrt_", "v_sin_", "v_cos_")

class Ins:
    def __init__(self, text):
        self.text = text
        t = text.split(";")[0].strip()
        self.label = t.endswith(":") or t.startswith(".") or t == ""
        self.op = t.split()[0] if t and not self.label else ""
        rest = t[len(self.op):].strip() if self.op else ""
        rest_nb = re.sub(r":\[[0-9,]*\]", "", rest)
        ops = [o.strip() for o in rest_nb.split(",")] if rest_nb else []
        if ops:
            last = ops[-1].split()
            mods = last[1:]; ops[-1] = last[0] if last else ""
        else: mods = []
        self.mods = " ".join(mods)
        op = self.op
        self.valu = op.startswith("v_")
        self.mfma = op.startswith("v_mfma")
        self.trans = op.startswith(TRANS)
        self.dpp = "_dpp" in op
        self.perm = op.startswith("v_permlane")
        self.rdlane = op.startswith(("v_readlane", "v_readfirstlane"))
        self.vmem = op.startswith(("buffer_", "global_"))
        self.ds = op.startswith("ds_")
        self.ldsdma = self.vmem and " lds" in (" " + self.mods)
        self.w, self.r = [], []
        R = [regs_of(o) for o in ops]
        flat = lambda l: [x for y in l for x in y]
        if self.valu:
            if self.perm: self.w = flat(R[:2]); self.r = flat(R[:2])
            elif op.startswith(("v_add_co", "v_sub_co", "v_addc_co", "v_subb_co")):
                self.w = flat(R[:2]); self.r = flat(R[2:])
            else:
                self.w = R[0] if R else []; self.r = flat(R[1:])
                if op.startswith(("v_fmac", "v_dot2c", "v_writelane")) or self.dpp: self.r += self.w
            self.srcc = R[3] if self.mfma and len(R) > 3 else []
            self.srcab = flat(R[1:3]) if self.mfma else []
        elif self.vmem:
            if "store" in op or self.ldsdma or ("atomic" in op): self.r = flat(R)
            else: self.w = R[0]; self.r = flat(R[1:])
            self.wide = "store" in op and ("x3" in op or "x4" in op)
            self.data = R[0] if "store" in op and op.startswith("buffer_") else []
        elif self.ds:
            if op.startswith(("ds_read", "ds_bpermute", "ds_permute", "ds_swizzle")) or "_rtn" in op:
                self.w = R[0]; self.r = flat(R[1:])
            else: self.r = flat(R)
        elif op.startswith("s_"):
            if op.startswith(("s_cmp", "s_cbranch", "s_branch", "s_waitcnt", "s_nop", "s_barrier", "s_sleep", "s_endpgm", "s_setprio", "s_bitcmp")):
                self.r = flat(R)
            else:
                self.w = R[0] if R else []; self.r = flat(R[1:])
        self.states = 0 if self.label else 1
        if op == "s_nop": self.states = int(ops[0], 0) + 1

def need(p, c):
    n = 0
    pw = set(p.w); cr = set(c.r); cw = set(c.w)
    vw = {x for x in pw if x[0] in "va"}; sw = {x for x in pw if x[0] == "s"}
    if p.valu and not p.mfma:
        if c.mfma and vw & cr: n = max(n, 2)
        if (c.dpp or c.perm) and vw & cr: n = max(n, 2)
        if c.rdlane and vw & cr: n = max(n, 1)
        if p.trans and c.valu and not c.trans and vw & cr: n = max(n, 1)
        if sw & cr:
            if c.vmem: n = max(n, 5)
            elif c.rdlane or c.op.startswith("v_writelane"): n = max(n, 4)
            elif c.valu: n = max(n, 2)
    if p.mfma:
        passes = 8 if "32x32" in p.op else 4
        full = {4: 8, 8: 12}[passes]
        if c.mfma:
            if vw & set(c.srcab): n = max(n, full)
            if vw & set(c.srcc) and (sorted(p.w) != sorted(c.srcc) or p.op != c.op): n = max(n, full - 2)
            if vw & cw and not (vw & set(c.srcc)): n = max(n, full)
        elif (c.valu or c.vmem or c.ds) and vw & (cr | cw): n = max(n, full)
        if c.valu and not c.mfma and set(p.srcc) & cw: n = max(n, passes - 1)
    if p.vmem and getattr(p, "wide", False) and set(p.data) & cw: n = max(n, 2)
    if p.op.startswith("s_") and ("s", 124) in pw and (c.ldsdma): n = max(n, 1)
    return n

def pad(lines):
    out = []
    for text in lines:
        for t in text.split("\n"):
            c = Ins(t)
            if not c.label:
                dist = 0; req = 0
                for p in reversed(out):
                    if dist >= 20: break
                    if not p.label:
                        req = max(req, need(p, c) - dist)
                    dist += p.states
                if req > 0:
                    out.append(Ins(f"    s_nop {req-1}"))
            out.append(c)
    return [i.text for i in out]
```

```python
import sys, struct
from asmlib import pad
NAME = "sequential_preLN__sliding_block_cached__glu_gated_bilinear__decode"

def f2u(x): return struct.unpack("<I", struct.pack("<f", x))[0]

WS_E, WS_RDY, WS_P, WS_ST, WS_Q, WS_O, WS_F = 0x0, 0x4000, 0xC0000, 0x10000, 0x20000, 0x40000, 0x80000
WS_HN = 0x6000
Q_ALT = 0x100000
WS_STAMP = 0x100000
WS_SIZE = 0x200000
L_WQ = 0x20000
L_RED = 0x20000
L_RED2, L_R3, L_R3S, L_HH, L_G = 0x22000, 0x22400, 0x23400, 0x23800, 0x23A00
L_X, L_QS, L_PT, L_FL = 0x24000, 0x24E00, 0x25F00, 0x26700
LDS_SIZE = 0x26800
QP = 528
F_QRDY, F_CNT, F_DONE, F_CNT2, F_PROG, F_PRDY, F_M, F_ZERO = 0, 4, 8, 12, 16, 32, 64, 112
SPIN_LDS, SPIN_MEM = 1 << 21, 1 << 18
N_WO, FFN0, FIN0, REF0 = 14, 14, 21, 25
PATS = {1: ([13, 12, 15, 17, 20], [14, 16], [10, 11, 18, 19]),
        2: ([13, 11, 15, 17, 20], [12, 16], [10, 14, 18, 19]),
        3: ([13, 12, 17, 18, 20], [14, 16], [10, 11, 15, 19]),
        4: ([13, 10, 16, 17, 20], [12, 19], [11, 14, 15, 18]),
        5: ([13, 14, 15, 17, 20], [12, 16], [10, 11, 18, 19]),
        6: ([13, 10, 16, 17, 20], [11, 15], [12, 14, 18, 19]),
        7: ([13, 15, 20, 17, 19], [10, 11], [12, 14, 16, 18]),
        8: ([13, 11, 17, 19, 20], [14, 18], [10, 12, 15, 16]),
        9: ([13, 15, 17, 19, 20], [12, 18], [10, 11, 14, 16])}

def gen(window=6, vwin=7, w0=8, stamps=False, force_sc1=False, pat=9, qtrig=24, strig=26, wtrig=32, wptrig=32,
        qalt=3, q3=0, q2=0, qrot=14, fbias=0, fw=8, ahead=2, opipe=0, wb=0, outsc=0, hsc=0, touch=1, hint=1, hcnt=24, ofirst=1, pfirst=1, vtrig=0, hpos=1, pskip=0, pdepth=1, nofw=0, nowo=0, wqgap=0, nodup=2, ftrig=33, kf=0, kp=0, kd=0, kw=0, early=2, psleep=0, fsleep=0, fdelay=0, rsl=0, osleep=0, p8=1,
        align=1, refp=0, reff=0, rsleep=1, rdepth=12, spec=1, lmask=-1, hmask=-1, pa=-1, pb=-1, pwg=-1, pwave=0, padto=0,
        patv=None):
    L = []
    def a(s): L.append("    " + s)
    def lab(s): L.append(s + ":")
    uid = [0]
    def new(p): uid[0] += 1; return f"L_{p}{uid[0]}"
    sWAVE, sX, sI, sB, sS, sWL, sH = "s3", "s4", "s5", "s6", "s7", "s8", "s9"
    sT0, sT1, sT2, sT3, sCNT, sSAME = "s10", "s11", "s12", "s13", "s14", "s15"
    K, V, WS, X, WQ, WO, WG, WU, WD, OUT = (f"s[{n}:{n+3}]" for n in range(40, 80, 4))
    PHI = "s83"
    vw = vwin or window
    far = []
    def page():
        if align: L.append(".p2align 12")
    def srd(n, lo, size):
        a(f"s_mov_b32 s{n}, s{lo}"); a(f"s_mov_b32 s{n+1}, s{lo+1}")
        a(f"s_mov_b32 s{n+2}, {size:#x}"); a(f"s_mov_b32 s{n+3}, 0x20000")
    side = ["L"]
    def stamp(k):
        if stamps and ((lmask if side[0] == "L" else hmask) >> k) & 1:
            a("s_memrealtime s[100:101]"); a("s_waitcnt lgkmcnt(0)"); a(f"s_mov_b32 s{84+k}, s100")
    def vr(b, n): return f"v[{b}:{b+n-1}]"
    def mfma(d, x, y, first): a(f"v_mfma_f32_16x16x32_bf16 {vr(d,4)}, {vr(x,4)}, {vr(y,4)}, " + ("0" if first else vr(d,4)))
    def bound():
        a(f"s_add_u32 {sCNT}, {sCNT}, 1"); a(f"s_cmp_gt_u32 {sCNT}, {SPIN_MEM}"); a("s_cbranch_scc1 L_exit")
    def lds_spin(vaddr, off, dst=sT0, four=None, ge=1):
        l, d = new("spin"), new("got")
        a(f"s_mov_b32 {sCNT}, 0")
        lab(l)
        if four is None: a(f"ds_read_b32 v1, {vaddr} offset:{off}")
        else: a(f"ds_read_b128 {vr(four,4)}, {vaddr} offset:{off}")
        a(f"s_add_u32 {sCNT}, {sCNT}, 1")
        a("s_waitcnt lgkmcnt(0)")
        if four is not None:
            a(f"v_min3_u32 v1, v{four}, v{four+1}, v{four+2}"); a(f"v_min_u32 v1, v1, v{four+3}")
        a(f"v_readfirstlane_b32 {dst}, v1")
        a(f"s_cmp_ge_u32 {dst}, {ge}"); a(f"s_cbranch_scc1 {d}")
        a(f"s_cmp_gt_u32 {sCNT}, {SPIN_LDS}"); a("s_cbranch_scc1 L_exit")
        a("s_sleep 1"); a(f"s_branch {l}")
        lab(d)
    def dpp(op, d, s, ctl): a(f"{op}_dpp v{d}, v{s}, v{s} {ctl} row_mask:0xf bank_mask:0xf")
    def allreduce(op, regs, tmps, swaps=("v_permlane16_swap_b32", "v_permlane32_swap_b32"), rors=(8, 4, 2, 1)):
        for sh in rors:
            for r in regs: dpp(op, r, r, f"row_ror:{sh}")
        for sw in swaps:
            for r, t in zip(regs, tmps): a(f"v_mov_b32 v{t}, v{r}")
            for r, t in zip(regs, tmps): a(f"{sw} v{r}, v{t}")
            for r, t in zip(regs, tmps): a(f"{op} v{r}, v{r}, v{t}")
    def store_local(t):
        if force_sc1:
            a(t + " sc1"); return
        l1, l2 = new("far"), new("st")
        a(f"s_cmp_eq_u32 {sSAME}, 2"); a(f"s_cbranch_scc0 {l1}")
        a(t)
        lab(l2)
        far.append((l1, t, l2))
    def flush_far():
        for l1, t, l2 in far:
            lab(l1); a(t + " sc1"); a(f"s_branch {l2}")
        far.clear()
    def maxchain(dst, regs, acc=False):
        rest = list(regs)
        if not acc:
            if len(rest) == 2:
                a(f"v_max_u32 v{dst}, v{rest[0]}, v{rest[1]}"); return
            a(f"v_max3_u32 v{dst}, v{rest[0]}, v{rest[1]}, v{rest[2]}"); rest = rest[3:]
        while rest:
            if len(rest) >= 2:
                a(f"v_max3_u32 v{dst}, v{dst}, v{rest[0]}, v{rest[1]}"); rest = rest[2:]
            else:
                a(f"v_max_u32 v{dst}, v{dst}, v{rest[0]}"); rest = []
    def poll(loads, regs, tmp=1, sleep=0):
        l = new("poll")
        a(f"s_mov_b32 {sCNT}, 0")
        lab(l)
        if sleep: a(f"s_sleep {sleep}")
        for t in loads: a(t + " sc1")
        bound()
        a("s_waitcnt vmcnt(0)")
        maxchain(tmp, regs)
        a(f"v_cmp_eq_u32 vcc, -1, v{tmp}")
        a("s_and_b64 exec, exec, vcc")
        a(f"s_cbranch_scc1 {l}")
        a("s_mov_b64 exec, -1")
    def tagpoll(voff):
        l = new("tag")
        a(f"s_mov_b32 {sCNT}, 0"); a(f"s_mov_b32 {sT0}, {WS_RDY:#x}")
        lab(l)
        a(f"buffer_load_dwordx2 v[24:25], {voff}, {WS}, {sT0} offen sc1")
        bound()
        a("s_waitcnt vmcnt(0)")
        a("v_xor_b32 v24, v24, v2"); a("v_xor_b32 v25, v25, v3"); a("v_or_b32 v24, v24, v25")
        a("v_cmp_ne_u32 vcc, 0, v24")
        a("s_and_b64 exec, exec, vcc"); a(f"s_cbranch_scc1 {l}")
        a("s_mov_b64 exec, -1")
    def refresher(voff, soff):
        l = new("ref")
        a("v_mov_b32 v20, -1"); a(f"s_mov_b32 {sCNT}, 0")
        lab(l)
        a(f"buffer_load_dword v20, {voff}, {WS}, {soff} offen sc1")
        bound()
        a(f"s_waitcnt vmcnt({rdepth-1})")
        a(f"s_sleep {rsleep}")
        a("v_cmp_eq_u32 vcc, -1, v20")
        a("s_and_b64 exec, exec, vcc"); a(f"s_cbranch_scc1 {l}")
        a("s_branch L_exit")
    def gwait(k):
        if not k: return
        l, d = new("gw"), new("gd")
        a("v_bfe_u32 v1, v0, 4, 1"); a("v_lshlrev_b32 v1, 14, v1"); a("v_lshl_add_u32 v221, v13, 4, v1")
        a(f"s_lshl_b32 s31, {sX}, 15"); a(f"s_add_u32 s31, s31, {WS_O:#x}"); a(f"s_mov_b32 {sCNT}, 0")
        lab(l)
        a(f"buffer_load_dword v222, v221, {WS}, s31 offen sc1")
        bound()
        a("s_waitcnt vmcnt(0)")
        a("v_cmp_ne_u32 vcc, -1, v222"); a(f"s_bcnt1_i32_b32 {sT0}, vcc_lo")
        a(f"s_cmp_ge_u32 {sT0}, {k}"); a(f"s_cbranch_scc1 {d}")
        a("s_sleep 2"); a(f"s_branch {l}")
        lab(d)
    def dma(voff, srd_, soff):
        if not (nowo if srd_ == WO else nofw): a(f"buffer_load_dwordx4 {voff}, {srd_}, {soff} offen lds")
        a("s_add_u32 m0, m0, 1024")
    def maketag():
        a("v_add_u32 v2, 0x7f4a7c15, v2"); a("v_add_u32 v3, 0x9e3779b0, v3"); a("v_and_b32 v3, -16, v3")

    L.append(f"; @launch grid=(256,1,1) block=(512,1,1) lds={LDS_SIZE}")
    L.append('.amdgcn_target "amdgcn-amd-amdhsa--gfx950"')
    L.append(".text"); L.append(f".globl {NAME}_kernel"); page(); L.append(".p2align 8")
    L.append(f".type {NAME}_kernel,@function"); lab(f"{NAME}_kernel")
    a("s_cmp_ge_u32 s2, 256"); a("s_cbranch_scc1 L_end0")
    a("s_load_dwordx16 s[16:31], s[0:1], 0")
    a("s_load_dwordx8 s[32:39], s[0:1], 64")
    if stamps or pwg >= 0:
        for k in range(16): a(f"s_mov_b32 s{84+k}, 0")
        a("s_memrealtime s[82:83]")
    a("v_lshrrev_b32 v1, 6, v0")
    a("v_and_b32 v0, 63, v0")
    a(f"v_readfirstlane_b32 {sWAVE}, v1")
    a("v_and_b32 v2, 31, v0"); a(f"v_mov_b32 v7, {L_FL:#x}"); a("v_lshl_add_u32 v3, v2, 2, v7"); a("v_mov_b32 v4, 0")
    a("ds_write_b32 v3, v4")
    a(f"s_and_b32 {sX}, s2, 7"); a(f"s_lshr_b32 {sI}, s2, 3")
    a(f"s_lshr_b32 {sB}, {sI}, 4"); a(f"s_and_b32 {sS}, {sI}, 15")
    a(f"s_lshl_b32 {sWL}, {sX}, 5"); a(f"s_add_u32 {sWL}, {sWL}, {sI}")
    a(f"s_and_b32 {sH}, {sWAVE}, 3")
    sQ = sI
    if qrot:
        sQ = "s81"; a(f"s_add_u32 {sQ}, {sI}, {qrot}"); a(f"s_and_b32 {sQ}, {sQ}, 31")
    a(f"v_lshl_add_u32 v6, {sH}, 2, v7")
    a("v_mov_b32 v5, 1")
    a(f"s_cmp_ge_u32 {sWAVE}, 4"); a("s_cbranch_scc1 L_helper")

    tb, hb, sb = patv or PATS[pat]
    PAIR = 1 << tb[0]
    def toff(r): return sum(((r >> j) & 1) << tb[j + 1] for j in range(4))
    a("v_lshrrev_b32 v1, 3, v0"); a("v_and_b32 v4, 7, v0"); a("v_lshlrev_b32 v4, 4, v4"); a("v_lshl_add_u32 v16, v1, 13, v4")
    a(f"s_lshr_b32 {sT0}, {sQ}, 3"); a(f"s_lshl2_add_u32 {sT0}, {sH}, {sT0}"); a(f"s_lshl_b32 {sT0}, {sT0}, 18")
    a(f"s_and_b32 {sT1}, {sQ}, 7"); a(f"s_lshl3_add_u32 {sT1}, {sX}, {sT1}"); a(f"s_lshl_b32 {sT1}, {sT1}, 7")
    a(f"s_add_u32 {sT3}, {sT0}, {sT1}")
    a(f"s_lshl_b32 {sT1}, {sH}, 12"); a(f"s_add_u32 m0, {sT1}, {L_WQ:#x}")
    a("s_mov_b32 s58, 0x380000"); a("s_mov_b32 s59, 0x20000"); a("s_mov_b32 s42, 0x10000000"); a("s_mov_b32 s43, 0x20000")
    a("v_lshrrev_b32 v1, 5, v0"); a("v_xor_b32 v2, v2, v1"); a("v_lshlrev_b32 v2, 4, v2")
    a("v_lshl_add_u32 v8, v1, 9, v2")
    a(f"v_add_u32 v9, {PAIR - 1024}, v8"); a("v_xor_b32 v9, 32, v9")
    a(f"s_lshl3_add_u32 {sT0}, {sB}, {sX}"); a(f"s_lshl_b32 {sT0}, {sT0}, 24")
    a(f"s_add_u32 s80, {sT0}, 0xE00000")
    for reg, bits in ((sH, hb), (sS, sb)):
        j = 0
        while j < len(bits):
            k = j
            while k + 1 < len(bits) and bits[k + 1] == bits[k] + 1: k += 1
            a(f"s_bfe_u32 {sT0}, {reg}, {((k - j + 1) << 16) | j:#x}"); a(f"s_lshl_b32 {sT0}, {sT0}, {bits[j]}"); a(f"s_add_u32 s80, s80, {sT0}")
            j = k + 1
    a(f"s_lshl_b32 {sT2}, {sH}, 15")
    a("s_waitcnt lgkmcnt(0)")
    stamp(9)
    a("s_mov_b64 s[56:57], s[22:23]"); a("s_mov_b64 s[40:41], s[18:19]")
    landed = 0; sig = False
    order = []; kq = 0
    for n in range(33):
        while kq < 4 and n >= max(kq * wqgap, q3 if kq == 3 else q2 if kq == 2 else 0):
            order.append(("q", kq)); kq += 1
        if n < 32: order.append(("k", n))
    lastq = max(i for i, o in enumerate(order) if o[0] == "q") + 1
    prev = "q"
    for idx, (kind, n) in enumerate(order):
        if kind == "q":
            if n: a(f"s_add_u32 m0, {sT1}, {L_WQ + 1024*n:#x}"); a(f"s_add_u32 {sT3}, {sT3}, 65536")
            a(f"buffer_load_dwordx4 v16, {WQ}, {sT3} offen nt lds")
        else:
            r, h = n >> 1, n & 1
            if h == 0 or prev == "q": a(f"s_add_u32 m0, {sT2}, {2048*r}")
            if h == 0: a(f"s_add_u32 {sT0}, s80, {toff(r):#x}")
            a(f"buffer_load_dwordx4 v{8+2*(r&3)+h}, {K}, {sT0} offen offset:{1024*h} nt lds")
            if n == 1:
                for k in range(2, 8): a(f"v_xor_b32 v{8+k}, {32*(k&~1)}, v{8+(k&1)}")
        prev = kind
        cnt = idx + 1
        w = w0 if cnt < w0 else window
        if cnt - (w - 1) > landed:
            first = landed == 0
            if first: a("s_barrier")
            landed = cnt - (w - 1); a(f"s_waitcnt vmcnt({w-1})")
            if first: stamp(6)
        if landed >= lastq and not sig:
            sig = True; a(f"ds_write_b32 v6, v5 offset:{F_PROG}")
            stamp(7)
        if idx - 3 == qtrig:
            a("v_mov_b32 v17, 2"); a(f"ds_write_b32 v6, v17 offset:{F_PROG}")
        if idx == 19: stamp(8)
        if idx == 24:
            srd(44, 20, 0x10000000); srd(48, 38, WS_SIZE)
            a("v_bfe_u32 v1, v0, 4, 1"); a("v_and_b32 v2, 15, v0"); a("v_lshlrev_b32 v2, 4, v2"); a("v_lshl_add_u32 v16, v1, 9, v2")
            a("v_lshrrev_b32 v1, 5, v0"); a(f"v_lshl_add_u32 v16, v1, {tb[0]}, v16")
    stamp(0)
    n = 0
    for r in range(16):
        a(f"s_add_u32 {sT0}, s80, {toff(r):#x}")
        for h in range(2):
            a(f"buffer_load_dwordx4 {vr(64+8*r+4*h,4)}, v16, {V}, {sT0} offen offset:{256*h} nt")
            n += 1
            if fbias and n == fbias:
                a(f"s_sub_u32 {sT1}, {sI}, {FFN0}"); a(f"s_cmp_lt_u32 {sT1}, 7"); a("s_cselect_b64 vcc, 0, -1")
            if fbias and fbias <= n < 32:
                a(f"s_waitcnt vmcnt({fw-1})"); a(f"s_cbranch_vccz L_fb{n}"); a(f"s_waitcnt vmcnt({vw-1})"); lab(f"L_fb{n}")
            elif n < 32: a(f"s_waitcnt vmcnt({(window if n < window else vw)-1})")
            if n in (window - 1, wtrig, wptrig, strig, ftrig, 32):
                a(f"v_mov_b32 v9, {8+n}"); a(f"ds_write_b32 v6, v9 offset:{F_PROG}")
            if n == window - 1: stamp(1)
            if n == window + 1:
                a("v_and_b32 v1, 1, v0"); a("v_lshlrev_b32 v1, 4, v1"); a("v_mov_b32 v2, 0xffff"); a("v_lshlrev_b32 v2, v1, v2")
                a("v_bfe_u32 v1, v0, 1, 2")
                for q in range(4):
                    a(f"v_cmp_eq_u32 vcc, {q}, v1"); a(f"v_cndmask_b32 v{20+q}, 0, v2, vcc")
                a("v_bfe_u32 v1, v0, 3, 1"); a("v_lshlrev_b32 v1, 8, v1"); a("v_lshrrev_b32 v2, 4, v0"); a("v_lshl_add_u32 v1, v2, 6, v1")
                a(f"s_lshl_b32 {sT1}, {sH}, 9"); a(f"s_add_u32 {sT1}, {sT1}, {L_PT:#x}"); a(f"v_add_u32 v17, {sT1}, v1")
                a(f"s_lshl_b32 {sT1}, {sH}, 11"); a(f"s_add_u32 {sT1}, {sT1}, {L_RED:#x}")
                a("v_lshlrev_b32 v1, 4, v0"); a(f"v_add_u32 v18, {sT1}, v1")
            if n == window + 3:
                a("v_and_b32 v1, 47, v0"); a("v_lshlrev_b32 v1, 4, v1"); a("v_bfe_u32 v2, v0, 4, 1"); a("v_lshl_add_u32 v1, v2, 10, v1")
                a(f"v_add_u32 v19, {L_RED:#x}, v1")
                a("v_lshrrev_b32 v1, 5, v0"); a("v_lshl_add_u32 v4, v1, 4, v7"); a(f"v_lshl_add_u32 v8, {sH}, 2, v4")
                a("v_lshlrev_b32 v3, 8, v0")
                a(f"s_lshr_b32 {sT3}, {sWL}, 4"); a(f"s_lshl_b32 {sT3}, {sT3}, 14"); a(f"s_lshl4_add_u32 {sT3}, {sS}, {sT3}")
                a(f"s_add_u32 {sT3}, {sT3}, {WS_O:#x}")
    stamp(2)
    lds_spin("v7", F_PRDY, four=24)
    for j in range(4): a(f"ds_read_b128 {vr(24+4*j,4)}, v17 offset:{16*j}")
    a(f"ds_read_b128 v[56:59], v4 offset:{F_M}"); a(f"ds_read_b32 v60, v8 offset:{F_M}")
    a(f"ds_read_b32 v2, v7 offset:{F_QRDY}")
    a("s_waitcnt lgkmcnt(0)")
    a(f"v_readfirstlane_b32 {sSAME}, v2")
    stamp(3)
    def amask(r):
        for j in range(4): a(f"v_and_b32 v{40+4*(r&1)+j}, v{24+r}, v{20+j}")
    amask(0)
    a("v_max3_f32 v56, v56, v57, v58"); a("v_max_f32 v56, v56, v59"); a("v_sub_f32 v56, v60, v56"); a("v_exp_f32 v56, v56")
    for r in range(16):
        if r < 15: amask(r + 1)
        if r == 1: a("v_mov_b32 v57, v56")
        for h in range(2):
            if 31 - 2 * r - h < max(vw, fw if fbias else 0): a(f"s_waitcnt vmcnt({31-2*r-h})")
            mfma(48 + 4 * h, 40 + 4 * (r & 1), 64 + 8 * r + 4 * h, r == 0)
    if vtrig: a("v_mov_b32 v9, 41"); a(f"ds_write_b32 v6, v9 offset:{F_PROG}")
    stamp(4)
    for h in range(2):
        for j in (0, 2): a(f"v_pk_mul_f32 {vr(48+4*h+j,2)}, {vr(48+4*h+j,2)}, v[56:57]")
        a(f"ds_write_b128 v18, {vr(48+4*h,4)} offset:{1024*h}")
    a("s_mov_b64 exec, 1")
    a(f"ds_add_rtn_u32 v1, v7, v5 offset:{F_CNT}")
    a("s_mov_b64 exec, -1")
    for z in range(2):
        for w in range(4): a(f"ds_read_b128 {vr(64+16*z+4*w,4)}, v19 offset:{2048*w+256*z}")
    a("s_waitcnt lgkmcnt(8)")
    a(f"v_readfirstlane_b32 {sT0}, v1")
    a(f"s_cmp_eq_u32 {sT0}, 3"); a("s_cbranch_scc0 L_exitL")
    for z in range(2):
        b0 = 64 + 16 * z
        a(f"s_waitcnt lgkmcnt({4-4*z})")
        for j in (0, 2):
            a(f"v_pk_add_f32 {vr(b0+j,2)}, {vr(b0+j,2)}, {vr(b0+4+j,2)}")
            a(f"v_pk_add_f32 {vr(b0+8+j,2)}, {vr(b0+8+j,2)}, {vr(b0+12+j,2)}")
        for j in (0, 2): a(f"v_pk_add_f32 {vr(b0+j,2)}, {vr(b0+j,2)}, {vr(b0+8+j,2)}")
        a(f"v_cvt_pk_bf16_f32 v{48+2*z}, v{b0}, v{b0+1}"); a(f"v_cvt_pk_bf16_f32 v{49+2*z}, v{b0+2}, v{b0+3}")
        a(f"v_min_u32 v{48+2*z}, -2, v{48+2*z}"); a(f"v_min_u32 v{49+2*z}, -2, v{49+2*z}")
    store_local(f"buffer_store_dwordx4 v[48:51], v3, {WS}, {sT3} offen")
    a(f"ds_write_b32 v7, v5 offset:{F_DONE}")
    stamp(5)
    lab("L_exitL")
    if stamps or pwg >= 0: a("s_branch L_exit")
    lab("L_end0")
    a("s_endpgm")
    flush_far()

    page()
    lab("L_helper")
    side[0] = "H"
    a("v_lshrrev_b32 v12, 4, v0"); a("v_and_b32 v13, 15, v0")
    a("v_mov_b32 v14, 0"); a("v_lshlrev_b32 v15, 4, v0")
    a("v_bfe_u32 v1, v0, 2, 2"); a("v_lshl_add_u32 v10, v12, 3, v1"); a("v_and_b32 v11, 3, v0")
    a("s_getreg_b32 s80, hwreg(HW_REG_XCC_ID, 0, 4)")
    a(f"s_mov_b32 m0, {L_X:#x}")
    a(f"s_mul_i32 {sT3}, {sX}, 7"); a(f"s_add_u32 {sT3}, {sT3}, {sI}")
    a("s_waitcnt lgkmcnt(0)")
    a("s_barrier")
    a(f"s_sub_u32 {PHI}, {sT3}, {FFN0}")
    srd(48, 38, WS_SIZE); srd(52, 16, 2*448*2)
    a(f"buffer_load_dwordx2 v[2:3], v14, {WS}, 0 offen sc1")
    a(f"s_cmp_eq_u32 {sH}, 0"); a("s_cbranch_scc1 L_q")
    a(f"s_cmp_eq_u32 {sH}, 1"); a("s_cbranch_scc0 L_noclr")
    a(f"s_cmp_lt_u32 {sI}, {FIN0}"); a("s_cbranch_scc0 L_noclr")
    for r in range(4): a(f"v_mov_b32 v{28+r}, -1")
    a(f"s_cmp_lt_u32 {sI}, {N_WO}"); a("s_cbranch_scc1 L_clrP")
    a(f"s_mul_i32 {sT0}, {PHI}, 3584"); a(f"s_add_u32 {sT0}, {sT0}, {WS_F:#x}")
    for k in (0, 1024, 2048, 2560): a(f"buffer_store_dwordx4 v[28:31], v15, {WS}, {sT0} offen offset:{k} sc1")
    a("s_branch L_clrd")
    lab("L_clrP")
    a("v_lshrrev_b32 v1, 3, v0"); a("v_and_b32 v4, 7, v0"); a("v_lshlrev_b32 v4, 4, v4"); a("v_lshl_add_u32 v4, v1, 14, v4")
    if not p8: a("s_mov_b64 exec, 0xff")
    a(f"s_lshl_b32 {sT0}, s2, 7"); a(f"s_add_u32 {sT0}, {sT0}, {WS_P:#x}")
    a(f"buffer_store_dwordx4 v[28:31], v4, {WS}, {sT0} offen sc1")
    a("s_mov_b64 exec, -1")
    lab("L_clrd")
    a(f"s_lshl_b32 {sT0}, {sWL}, 4"); a(f"s_add_u32 {sT0}, {sT0}, {WS_RDY:#x}")
    a("s_waitcnt vmcnt(0)")
    maketag()
    a("s_mov_b64 exec, 1")
    a(f"buffer_store_dwordx2 v[2:3], v14, {WS}, {sT0} offen sc1")
    a("s_mov_b64 exec, -1")
    a("s_branch L_qdone")
    lab("L_noclr")
    a("s_waitcnt vmcnt(0)")
    maketag()
    a("s_branch L_qdone")
    lab("L_q")
    a(f"buffer_load_dwordx4 v15, {X}, 0 offen lds")
    a("s_mov_b32 exec_hi, 0xffff")
    a(f"buffer_load_dwordx4 v15, {X}, 0 offen offset:1024 lds")
    a("s_mov_b32 exec_hi, 0xffffff")
    for r in range(4): a(f"v_mov_b32 v{20+r}, 0x3f803f80")
    for r in range(4): a(f"v_mov_b32 v{24+r}, 0")
    a(f"v_add_u32 v1, {L_X:#x}, v15")
    a("ds_write_b128 v1, v[20:23] offset:1792"); a("ds_write_b128 v1, v[24:27] offset:2688")
    a("s_mov_b64 exec, -1")
    a("v_mul_u32_u24 v1, 896, v11"); a("v_lshl_add_u32 v1, v12, 4, v1"); a(f"v_add_u32 v4, {L_X:#x}, v1")
    a(f"s_lshr_b32 {sT0}, {sQ}, 3"); a(f"s_lshl_b32 {sT1}, {sT0}, 6"); a(f"v_add_u32 v8, {sT1}, v4")
    a(f"v_mov_b32 v9, {L_X + 2688 - 768:#x}"); a(f"s_cmp_ge_u32 {sT0}, 2"); a("s_cselect_b64 vcc, -1, 0"); a("v_cndmask_b32 v9, v8, v9, vcc")
    a("v_lshlrev_b32 v1, 7, v10"); a("v_lshl_add_u32 v1, v11, 3, v1"); a(f"v_add_u32 v16, {L_WQ:#x}, v1")
    a("s_waitcnt vmcnt(0)")
    stamp(0)
    for u in range(14): a(f"ds_read_b128 {vr(64+4*u,4)}, v4 offset:{64*u}")
    maketag()
    for u in range(14):
        a(f"s_waitcnt lgkmcnt({13-u})")
        mfma(20, 64 + 4 * u, 64 + 4 * u, u == 0)
    for u in range(4): a(f"ds_read_b128 {vr(120+4*u,4)}, v{9 if u == 3 else 8} offset:{256*u}")
    a("v_and_b32 v1, 1, v0"); a("v_cmp_eq_u32 vcc, 1, v1"); a("v_cndmask_b32 v20, v20, v21, vcc")
    a(f"v_mul_f32 v44, {f2u(1/448):#x}, v22")
    a(f"v_mul_f32 v45, {f2u(1/448):#x}, v20")
    a("v_fma_f32 v45, -v44, v44, v45"); a("v_max_f32 v45, 0, v45")
    a(f"v_add_f32 v45, {f2u(1e-5):#x}, v45"); a("v_rsq_f32 v45, v45")
    lds_spin("v7", F_PROG, four=24)
    stamp(13)
    for u in range(4):
        for t in range(4):
            a(f"ds_read_b64_tr_b16 {vr(136+16*u+4*t,2)}, v16 offset:{4096*u+32*t}")
            a(f"ds_read_b64_tr_b16 {vr(138+16*u+4*t,2)}, v16 offset:{4096*u+32*t+512}")
        a("s_waitcnt lgkmcnt(0)")
        for t in range(4): mfma(24 + 4 * t, 136 + 16 * u + 4 * t, 120 + 4 * u, u == 0)
    a("v_lshrrev_b32 v1, 2, v13")
    for t in range(1, 4):
        a(f"v_cmp_eq_u32 vcc, {t}, v1")
        for j in range(4): a(f"v_cndmask_b32 v{24+j}, v{24+j}, v{24+4*t+j}, vcc")
    for j in range(4): a(f"v_mov_b32_dpp v{32+j}, v{24+j} quad_perm:[2,2,2,2] row_mask:0xf bank_mask:0xf")
    for j in range(4): a(f"v_fma_f32 v{24+j}, -v44, v{32+j}, v{24+j}")
    for j in range(4): a(f"v_mul_f32 v{24+j}, v{24+j}, v45")
    a("v_mov_b32 v20, v2"); a("v_or_b32 v21, s80, v3")
    a("v_cvt_pk_bf16_f32 v22, v24, v25"); a("v_cvt_pk_bf16_f32 v23, v26, v27")
    a("v_lshlrev_b32 v1, 6, v1"); a("v_lshl_add_u32 v1, v12, 4, v1"); a("v_lshl_add_u32 v1, v11, 8, v1")
    a(f"s_lshl_b32 {sT0}, {sX}, 5"); a(f"s_add_u32 {sT0}, {sT0}, {sQ}"); a(f"s_lshl_b32 {sT0}, {sT0}, 9"); a(f"s_add_u32 {sT0}, {sT0}, {WS_Q:#x}")
    a("s_mov_b32 exec_lo, 0x33333333"); a("s_mov_b32 exec_hi, 0x33333333")
    a(f"buffer_store_dwordx4 v[20:23], v1, {WS}, {sT0} offen"); a(f"s_xor_b32 {sT0}, {sT0}, {Q_ALT:#x}")
    a(f"buffer_store_dwordx4 v[20:23], v1, {WS}, {sT0} offen sc1")
    a("s_mov_b64 exec, -1")
    stamp(1)
    lds_spin("v6", F_PROG, ge=2)
    a("v_lshlrev_b32 v1, 4, v13"); a("v_lshl_add_u32 v4, v12, 9, v1")
    a(f"s_lshl_b32 {sT0}, {sX}, 14"); a(f"s_lshl_b32 {sT1}, {sB}, 8"); a(f"s_add_u32 {sT0}, {sT0}, {sT1}"); a(f"s_add_u32 {sT0}, {sT0}, {WS_Q:#x}")
    a(f"s_add_u32 {sT1}, {sT0}, 4096"); a(f"s_add_u32 {sT2}, {sT0}, 8192"); a(f"s_add_u32 {sT3}, {sT0}, 12288")
    a(f"s_mov_b32 {sCNT}, 0")
    lab("L_qpoll")
    for u in range(8): a(f"buffer_load_dwordx4 {vr(64+4*u,4)}, v4, {WS}, {(sT0,sT1,sT2,sT3)[u>>1]} offen offset:{2048*(u&1)} sc1")
    bound()
    if qalt == 1:
        for r in (sT0, sT1, sT2, sT3): a(f"s_xor_b32 {r}, {r}, {Q_ALT:#x}")
    else:
        a(f"s_cmp_eq_u32 {sCNT}, {qalt}"); a(f"s_cselect_b32 s26, {Q_ALT:#x}, 0")
        for r in (sT0, sT1, sT2, sT3): a(f"s_xor_b32 {r}, {r}, s26")
    a("v_mov_b32 v32, 0"); a("v_mov_b32 v33, 0")
    a("s_waitcnt vmcnt(0)")
    for u in range(8):
        a(f"v_xor_b32 v34, v{64+4*u}, v2"); a(f"v_xor_b32 v35, v{65+4*u}, v21")
        a("v_or_b32 v32, v32, v34"); a("v_or_b32 v33, v33, v35")
    a("v_and_or_b32 v32, v33, -16, v32")
    a("v_cmp_ne_u32 vcc, 0, v32")
    a("s_and_b64 exec, exec, vcc"); a("s_cbranch_scc1 L_qpoll")
    a("s_mov_b64 exec, -1")
    a("v_lshlrev_b32 v1, 3, v0"); a(f"v_add_u32 v1, {L_QS:#x}, v1")
    for u in range(8): a(f"ds_write_b64 v1, {vr(66+4*u,2)} offset:{QP*u}")
    a("v_cmp_ne_u32 vcc, 0, v33")
    a("s_cmp_eq_u64 vcc, 0"); a(f"s_cselect_b32 {sSAME}, 2, 1"); a(f"v_mov_b32 v1, {sSAME}")
    a(f"ds_write_b32 v7, v1 offset:{F_QRDY}")
    for r in range(4): a(f"v_mov_b32 v{28+r}, -1")
    a("v_lshlrev_b32 v4, 8, v0")
    a(f"s_lshr_b32 {sT3}, {sWL}, 4"); a(f"s_lshl_b32 {sT3}, {sT3}, 14"); a(f"s_lshl4_add_u32 {sT3}, {sS}, {sT3}")
    a(f"s_add_u32 {sT3}, {sT3}, {WS_O:#x}")
    store_local(f"buffer_store_dwordx4 v[28:31], v4, {WS}, {sT3} offen")
    lab("L_qdone")
    lds_spin("v7", F_QRDY, sSAME)
    stamp(2)
    a("v_bfe_u32 v1, v0, 2, 1"); a("v_lshl_add_u32 v1, v11, 1, v1"); a(f"v_mul_u32_u24 v1, {QP}, v1")
    a("v_lshl_add_u32 v1, v12, 4, v1"); a(f"v_add_u32 v4, {L_QS:#x}, v1")
    for u in range(8): a(f"ds_read_b128 {vr(64+4*u,4)}, v4 offset:{64*u}")
    a(f"s_lshl_b32 s80, {sH}, 15")
    a("v_xor_b32 v1, v12, v13"); a("v_lshlrev_b32 v1, 4, v1"); a("v_lshl_add_u32 v1, v13, 9, v1"); a("v_add_u32 v16, s80, v1")
    for u in range(1, 4): a(f"v_xor_b32 v{16+u}, {64*u}, v16")
    lds_spin("v6", F_PROG, ge=8+window-1)
    stamp(3)
    seq = [(t, u) for u in range(8) for t in range(4)]
    def kread(k):
        t, u = seq[k]
        a(f"ds_read_b128 {vr(96+4*k,4)}, v{16+(u&3)} offset:{8192*t+256*(u>>2)}")
    for k in range(12): kread(k)
    for k in range(32):
        if k + 12 < 32: kread(k + 12)
        t, u = seq[k]
        a(f"s_waitcnt lgkmcnt({min(12, 31-k)})")
        mfma(20 + 4 * t, 64 + 4 * u, 96 + 4 * k, u == 0)
    a("s_mov_b32 vcc_lo, 0"); a("s_mov_b32 vcc_hi, -1")
    a("v_and_b32 v1, 1, v12"); a("v_lshlrev_b32 v8, 10, v1"); a("v_lshl_add_u32 v9, v1, 4, v6")
    a("v_lshlrev_b32 v1, 8, v1"); a("v_lshl_add_u32 v1, v11, 6, v1"); a("v_and_b32 v4, 12, v0"); a("v_add_u32 v1, v1, v4")
    a("v_lshrrev_b32 v4, 5, v0"); a("v_lshl_add_u32 v1, v4, 4, v1")
    a(f"s_lshl_b32 {sT0}, {sH}, 9"); a(f"s_add_u32 {sT0}, {sT0}, {L_PT:#x}"); a(f"v_add_u32 v4, {sT0}, v1")
    for j in range(4):
        a(f"v_cndmask_b32 v{20+j}, v{20+j}, v{24+j}, vcc"); a(f"v_cndmask_b32 v{28+j}, v{28+j}, v{32+j}, vcc")
    a("v_add_f32 v20, v20, v21"); a("v_add_f32 v22, v22, v23"); a("v_add_f32 v28, v28, v29"); a("v_add_f32 v30, v30, v31")
    a("v_add_f32 v20, v20, v22"); a("v_add_f32 v21, v28, v30")
    c = f2u(1.4426950408889634 / 16)
    a(f"v_mul_f32 v20, {c:#x}, v20"); a(f"v_mul_f32 v21, {c:#x}, v21")
    a("v_max_f32 v24, v20, v21")
    allreduce("v_max_f32", [24], [28], swaps=("v_permlane32_swap_b32",))
    a("v_sub_f32 v20, v20, v24"); a("v_sub_f32 v21, v21, v24")
    a("v_exp_f32 v20, v20"); a("v_exp_f32 v21, v21")
    a(f"ds_write_b32 v9, v24 offset:{F_M}")
    a("v_add_f32 v25, v20, v21")
    a("v_cvt_pk_bf16_f32 v20, v20, v20"); a("v_cvt_pk_bf16_f32 v21, v21, v21")
    a("ds_write_b32 v4, v20"); a("ds_write_b32 v4, v21 offset:32")
    a("s_waitcnt vmcnt(0)")
    a(f"ds_write_b32 v6, v5 offset:{F_PRDY}")
    allreduce("v_add_f32", [25], [28], swaps=("v_permlane32_swap_b32",))
    a("v_mov_b32 v22, v2"); a("v_mov_b32 v23, v3")
    a(f"s_lshr_b32 {sT0}, {sWL}, 4"); a(f"s_lshl_b32 {sT0}, {sT0}, 11"); a(f"s_lshl2_add_u32 {sT1}, {sS}, {sH}")
    a(f"s_lshl4_add_u32 {sT0}, {sT1}, {sT0}"); a(f"s_add_u32 {sT0}, {sT0}, {WS_ST:#x}")
    a("s_mov_b64 exec, 0x10001")
    store_local(f"buffer_store_dwordx4 v[22:25], v8, {WS}, {sT0} offen")
    a("s_mov_b64 exec, -1")
    stamp(4)
    srd(60, 24, 4096*448*2)
    def wo_prefetch():
        if wptrig > 40 or nowo: return
        if wptrig <= 32: lds_spin("v6", F_PROG, ge=8+wptrig)
        else:
            lds_spin("v7", F_DONE); gwait(kw)
        a(f"s_lshl2_add_u32 {sT0}, {sWL}, {sH}"); a(f"s_mul_i32 {sT0}, {sT0}, {28*128}")
        a("v_lshlrev_b32 v1, 7, v0"); a("s_mov_b64 exec, 0xfffffff")
        a(f"buffer_load_dword v220, v1, {WO}, {sT0} offen")
        a("s_mov_b64 exec, -1")
    a("s_mov_b32 m0, s80")
    a("v_lshrrev_b32 v8, 2, v0")
    a("v_lshlrev_b32 v1, 6, v10"); a("v_lshl_add_u32 v1, v11, 3, v1"); a("v_add_u32 v16, s80, v1")
    if touch:
        a(f"s_mul_i32 {sT0}, {sX}, {512*896}"); a(f"v_mul_u32_u24 v1, {512*896-128}, v0"); a("s_mov_b64 exec, 3")
        a(f"buffer_load_dword v219, v1, {WO}, {sT0} offen"); a("s_mov_b64 exec, -1")
    a(f"s_cmp_lt_u32 {sI}, {N_WO}"); a("s_cbranch_scc1 L_wo")
    srd(64, 28, 448*1792*2); srd(68, 30, 448*1792*2); srd(72, 32, 1792*448*2)
    if touch:
        a(f"v_mul_u32_u24 v1, {448*3584-128}, v0"); a("s_mov_b64 exec, 3")
        for k, m in enumerate((WG, WU, WD)): a(f"buffer_load_dword v{216+k}, v1, {m}, 0 offen")
        a("s_mov_b64 exec, -1")
    a(f"s_cmp_lt_u32 {sI}, {FIN0}"); a("s_cbranch_scc1 L_ffn")
    a("s_branch L_final")
    flush_far()

    page()
    lab("L_wo")
    lds_spin("v6", F_PROG, ge=8+strig)
    a(f"s_lshl_b32 {sT1}, {sI}, 6")
    a(f"s_or_b32 {sT0}, {sX}, {sH}"); a(f"s_cselect_b32 {sT1}, 0x10000, {sT1}")
    a("v_lshrrev_b32 v1, 5, v0"); a("v_mul_u32_u24 v1, 896, v1"); a("v_and_b32 v4, 31, v0"); a("v_lshl_add_u32 v1, v4, 1, v1")
    a(f"buffer_load_ushort v38, v1, {X}, {sT1} offen")
    a(f"s_lshr_b32 {sT1}, {sH}, 1"); a(f"s_lshl2_add_u32 {sT0}, {sX}, {sT1}"); a(f"s_lshl_b32 {sT0}, {sT0}, 10"); a(f"s_add_u32 {sT0}, {sT0}, {WS_ST:#x}")
    a(f"s_mov_b32 {sCNT}, 0")
    lab("L_stpoll")
    a(f"buffer_load_dwordx4 v[28:31], v15, {WS}, {sT0} offen sc1"); a(f"buffer_load_dwordx4 v[32:35], v15, {WS}, {sT0} offen offset:2048 sc1")
    bound()
    a("s_waitcnt vmcnt(0)")
    a("v_xor_b32 v28, v28, v2"); a("v_xor_b32 v29, v29, v3"); a("v_xor_b32 v32, v32, v2"); a("v_xor_b32 v33, v33, v3")
    a("v_or_b32 v28, v28, v29"); a("v_or3_b32 v28, v28, v32, v33")
    a("v_cmp_ne_u32 vcc, 0, v28")
    a("s_and_b64 exec, exec, vcc"); a("s_cbranch_scc1 L_stpoll")
    a("s_mov_b64 exec, -1")
    stamp(5)
    dpp("v_max_f32", 24, 30, "quad_perm:[1,0,3,2]"); dpp("v_max_f32", 25, 34, "quad_perm:[1,0,3,2]")
    dpp("v_max_f32", 24, 24, "quad_perm:[2,3,0,1]"); dpp("v_max_f32", 25, 25, "quad_perm:[2,3,0,1]")
    a("v_mov_b32 v26, v24"); a("v_mov_b32 v27, v25")
    allreduce("v_max_f32", [26, 27], [28, 29], rors=(8, 4))
    a("v_sub_f32 v30, v30, v26"); a("v_sub_f32 v34, v34, v27"); a("v_sub_f32 v24, v24, v26"); a("v_sub_f32 v25, v25, v27")
    a("v_exp_f32 v30, v30"); a("v_exp_f32 v34, v34"); a("v_exp_f32 v24, v24"); a("v_exp_f32 v25, v25")
    a("v_mul_f32 v31, v31, v30"); a("v_mul_f32 v35, v35, v34")
    allreduce("v_add_f32", [31, 35], [28, 29])
    a("v_rcp_f32 v31, v31"); a("v_rcp_f32 v35, v35")
    a("v_lshlrev_b32 v38, 16, v38")
    a("v_mul_f32 v24, v24, v31"); a("v_mul_f32 v25, v25, v35")
    for bb in range(2):
        for j in range(4): a(f"v_mov_b32_dpp v{40+4*bb+j}, v{24+bb} row_newbcast:{4*j} row_mask:0xf bank_mask:0xf")
    a(f"s_lshl_b32 {sT2}, {sH}, 8"); a(f"s_add_u32 {sT2}, {sT2}, {L_RED2:#x}"); a("v_lshlrev_b32 v9, 2, v0"); a(f"v_add_u32 v36, {sT2}, v9")
    a("v_lshlrev_b32 v37, 4, v13"); a(f"v_add_u32 v37, {L_RED2:#x}, v37")
    a("v_lshlrev_b32 v1, 3, v13"); a("v_lshl_add_u32 v9, v12, 14, v1")
    a("v_mul_u32_u24 v17, 896, v8"); a("v_lshl_add_u32 v17, v11, 4, v17")
    a(f"s_lshl2_add_u32 {sT2}, {sX}, {sH}"); a(f"s_mul_i32 {sT2}, {sT2}, {128*896}")
    a(f"s_lshl_b32 {sT1}, {sI}, 6"); a(f"s_add_u32 {sT2}, {sT2}, {sT1}")
    a(f"s_lshl_b32 {sT3}, s2, 7"); a(f"s_add_u32 {sT3}, {sT3}, {WS_P:#x}"); a(f"s_add_u32 s28, {sT3}, 0x10000")
    wo_prefetch()
    if wtrig <= 32: lds_spin("v7", F_PROG, ge=8+wtrig, four=24)
    else: lds_spin("v7", F_DONE)
    for k in range(8):
        dma("v17", WO, sT2)
        if k < 7: a(f"s_add_u32 {sT2}, {sT2}, {16*896}")
    a(f"s_lshl3_add_u32 {sT0}, {sX}, {sH}"); a(f"s_lshl_b32 {sT0}, {sT0}, 12"); a(f"s_add_u32 {sT0}, {sT0}, {WS_O:#x}")
    a(f"s_add_u32 {sT1}, {sT0}, 16384")
    def oloads(bs):
        for bb in bs:
            for u in range(4): a(f"buffer_load_dwordx4 {vr(96+16*bb+4*u,4)}, v15, {WS}, {(sT0, sT1)[bb]} offen offset:{1024*u} sc1")
    def oround(bs, mid=None):
        if osleep: a(f"s_sleep {osleep}")
        oloads(bs)
        bound()
        if mid: lab(mid)
        left = 4 * len(bs)
        for bb in bs:
            for u in range(4):
                left -= 1
                a(f"s_waitcnt vmcnt({left})")
                for t in range(2): mfma(20 + 8 * bb + 4 * t, 96 + 16 * bb + 4 * u, 64 + 8 * u + 4 * t, u == 0)
                maxchain(48 + bb, range(96 + 16 * bb + 4 * u, 100 + 16 * bb + 4 * u), acc=u > 0)
    if ofirst:
        lds_spin("v7", F_DONE, dst=sT2)
        stamp(7)
        oloads((0, 1))
    for u in range(4):
        a(f"s_waitcnt vmcnt({6-2*u+(8 if ofirst else 0)})")
        for t in range(2):
            a(f"ds_read_b64_tr_b16 {vr(64+8*u+4*t,2)}, v16 offset:{2048*u+32*t}")
            a(f"ds_read_b64_tr_b16 {vr(66+8*u+4*t,2)}, v16 offset:{2048*u+32*t+256}")
        if u == 2: a("s_waitcnt lgkmcnt(4)")
    stamp(6)
    a(f"s_mov_b32 {sCNT}, 0")
    if ofirst:
        a("s_waitcnt lgkmcnt(0)"); a("s_branch L_omid")
    else:
        lds_spin("v7", F_DONE, dst=sT2)
        stamp(7)
    lab("L_oboth")
    oround((0, 1), "L_omid")
    a("v_cmp_eq_u32 vcc, -1, v48"); a("v_cmp_eq_u32 s[26:27], -1, v49")
    a("s_cbranch_vccz L_o0ok")
    a("s_cmp_eq_u64 s[26:27], 0"); a("s_cbranch_scc0 L_oboth")
    def osingle(bb, name):
        if not opipe:
            lab(name); oround((bb,))
            a(f"v_cmp_eq_u32 vcc, -1, v{48+bb}"); a(f"s_cbranch_vccnz {name}")
            return
        oloads((bb,))
        lab(name)
        oloads((bb,)); bound()
        for k in range(opipe):
            a(f"s_waitcnt vmcnt({8 - 4*(k+1)//opipe})")
            maxchain(48 + bb, range(96 + 16 * bb, 112 + 16 * bb))
            a(f"v_cmp_eq_u32 vcc, -1, v{48+bb}")
            a(f"s_cbranch_vccz {name}ok" if k < opipe - 1 else f"s_cbranch_vccnz {name}")
        lab(name + "ok")
        for u in range(4):
            for t in range(2): mfma(20 + 8 * bb + 4 * t, 96 + 16 * bb + 4 * u, 64 + 8 * u + 4 * t, u == 0)
        a("s_nop 3")
    osingle(0, "L_oonly0")
    a("s_branch L_odone")
    lab("L_o0ok")
    a("s_cmp_eq_u64 s[26:27], 0"); a("s_cbranch_scc1 L_odone")
    osingle(1, "L_oonly1")
    lab("L_odone")
    a("s_nop 3")
    stamp(8)
    for bb in range(2):
        for t in range(2):
            d = 20 + 8 * bb + 4 * t
            a(f"v_pk_mul_f32 {vr(d,2)}, {vr(d,2)}, {vr(40+4*bb,2)}")
    for bb in range(2):
        for t in range(2):
            d = 20 + 8 * bb + 4 * t
            a(f"v_pk_fma_f32 {vr(d,2)}, {vr(d+2,2)}, {vr(42+4*bb,2)}, {vr(d,2)}")
    for d in (20, 24, 28, 32): a(f"v_add_f32 v{d}, v{d}, v{d+1}")
    a("v_permlane32_swap_b32 v20, v28"); a("v_permlane32_swap_b32 v24, v32")
    a("v_add_f32 v20, v20, v28"); a("v_add_f32 v24, v24, v32")
    a("v_permlane16_swap_b32 v20, v24"); a("v_add_f32 v20, v20, v38"); a("v_add_f32 v20, v20, v24")
    a("ds_write_b32 v36, v20")
    a("s_mov_b64 exec, 1")
    a(f"ds_add_rtn_u32 v1, v7, v5 offset:{F_CNT2}")
    a("s_mov_b64 exec, -1")
    for k in range(4): a(f"ds_read_b128 {vr(128+4*k,4)}, v37 offset:{256*k}")
    a("s_waitcnt lgkmcnt(4)")
    a(f"v_readfirstlane_b32 {sT0}, v1")
    a(f"s_cmp_eq_u32 {sT0}, 3"); a("s_cbranch_scc0 L_exitW")
    a("s_waitcnt lgkmcnt(2)")
    for j in (0, 2): a(f"v_pk_add_f32 {vr(128+j,2)}, {vr(128+j,2)}, {vr(132+j,2)}")
    a("s_waitcnt lgkmcnt(0)")
    for j in (0, 2): a(f"v_pk_add_f32 {vr(136+j,2)}, {vr(136+j,2)}, {vr(140+j,2)}")
    for j in (0, 2): a(f"v_pk_add_f32 {vr(128+j,2)}, {vr(128+j,2)}, {vr(136+j,2)}")
    a("v_cvt_pk_bf16_f32 v20, v128, v129"); a("v_cvt_pk_bf16_f32 v21, v130, v131")
    a("v_min_u32 v20, -2, v20"); a("v_min_u32 v21, -2, v21")
    a(f"buffer_store_dwordx2 v[20:21], v9, {WS}, {sT3} offen sc1")
    a(f"buffer_store_dwordx2 v[20:21], v9, {WS}, s28 offen sc1")
    if wb == 1:
        a(f"s_cmp_eq_u32 {sI}, 0"); a("s_cbranch_scc0 L_exitW"); a("buffer_wbl2 sc1")
    stamp(9)
    lab("L_exitW")
    a("s_branch L_exit" if stamps or pwg >= 0 else "s_endpgm")

    page()
    lab("L_ffn")
    a("v_and_b32 v1, 7, v0"); a("v_lshlrev_b32 v1, 5, v1"); a("v_bfe_u32 v4, v0, 3, 2"); a("v_lshl_add_u32 v1, v4, 2, v1")
    a(f"v_add_u32 v1, {sH}, v1"); a("v_lshlrev_b32 v4, 4, v1")
    tagpoll("v4")
    a("v_lshlrev_b32 v48, 6, v13"); a("v_lshl_add_u32 v48, v12, 4, v48")
    a(f"s_cmp_ge_u32 {sH}, 2"); a(f"s_cselect_b32 {sT0}, 0x10000000, 0"); a(f"v_add_u32 v49, {sT0}, v48")
    a("v_lshlrev_b32 v1, 3, v0"); a(f"v_add_u32 v51, {L_R3:#x}, v1"); a(f"s_lshl_b32 {sT0}, {sH}, 9"); a(f"v_add_u32 v50, {sT0}, v51")
    a(f"s_lshl_b32 {sT0}, {sH}, 7"); a(f"s_add_u32 {sT0}, {sT0}, {L_HH:#x}"); a("v_lshlrev_b32 v1, 1, v0"); a(f"v_add_u32 v54, {sT0}, v1")
    a("v_lshrrev_b32 v1, 3, v13"); a("v_lshlrev_b32 v1, 6, v1"); a("v_lshl_add_u32 v1, v12, 4, v1"); a(f"v_add_u32 v1, {sT0}, v1")
    a("v_and_b32 v4, 7, v0"); a(f"v_mov_b32 v55, {L_FL + F_ZERO:#x}")
    for t in range(8):
        a(f"v_cmp_eq_u32 vcc, {t}, v4"); a(f"v_cndmask_b32 v{56+t}, v55, v1, vcc")
    for r in range(4): a(f"v_mov_b32 v{40+r}, 0x3f803f80")
    a(f"s_lshl_b32 s16, {sH}, 10"); a(f"s_add_u32 s16, s16, {WS_P:#x}")
    if p8: a(f"s_lshl_b32 {sT0}, {sX}, 14"); a(f"s_add_u32 s16, s16, {sT0}")
    for u in range(1, 4): a(f"s_add_u32 s{16+u}, s16, {4096*u}")
    a(f"s_mul_i32 {sT1}, {PHI}, 3584"); a(f"s_lshl_b32 {sT2}, {sH}, 10"); a(f"s_add_u32 {sT1}, {sT1}, {sT2}"); a(f"s_add_u32 s21, {sT1}, {WS_F:#x}")
    a(f"s_cmp_eq_u32 {sH}, 3"); a("s_cselect_b32 s20, 0, -1")
    a("s_mov_b32 s24, 0xffff0000"); a("s_mov_b32 s25, 0xffff0000")
    a("v_mul_u32_u24 v9, 3584, v8"); a("v_lshl_add_u32 v9, v11, 4, v9")
    a("v_xor_b32 v1, v12, v13"); a("v_mul_u32_u24 v17, 896, v12"); a("v_lshl_add_u32 v17, v1, 4, v17")
    a(f"s_cmp_eq_u32 {sH}, 3"); a(f"s_cselect_b32 {sT0}, 8, 16"); a(f"v_cmp_gt_u32 vcc, {sT0}, v13")
    a("v_mov_b32 v1, 0x10000000"); a("v_cndmask_b32 v17, v1, v17, vcc")
    a("v_lshlrev_b32 v1, 8, v10"); a("v_lshl_add_u32 v1, v11, 6, v1"); a("v_bfe_u32 v4, v0, 2, 2"); a("v_lshl_add_u32 v1, v4, 4, v1")
    a("v_add_u32 v64, s80, v1")
    for q in range(1, 4): a(f"v_xor_b32 v{64+q}, {16*q}, v64")
    a(f"s_mul_i32 s28, {sH}, {32*3584}"); a(f"s_lshl_b32 {sT1}, {PHI}, 6"); a(f"s_add_u32 s28, s28, {sT1}")
    a(f"s_add_u32 s29, s28, {16*3584}")
    a(f"s_mul_i32 s30, {PHI}, {32*896}"); a(f"s_lshl_b32 {sT1}, {sH}, 8"); a(f"s_add_u32 s30, s30, {sT1}")
    a(f"s_sub_u32 {sT1}, {sI}, {FFN0}"); a(f"s_lshl3_add_u32 {sT1}, {sX}, {sT1}"); a(f"s_lshl2_add_u32 {sT1}, {sT1}, {sH}")
    a(f"s_lshl2_add_u32 s33, {sT1}, {WS_HN:#x}")
    a(f"s_mov_b32 {sT2}, 0")
    wo_prefetch()
    gu = ((WG, "s28"), (WG, "s29"), (WU, "s28"), (WU, "s29"))
    issued = [0]
    def pull(upto):
        while issued[0] < min(upto, 24):
            k = issued[0]; issued[0] += 1
            if k < 16:
                dma("v9", *gu[k & 3])
                if k & 3 == 3 and k < 15: a(f"s_add_u32 s28, s28, {128*3584}"); a(f"s_add_u32 s29, s29, {128*3584}")
            else:
                dma("v17", WD, "s30")
                if k < 23: a(f"s_add_u32 s30, s30, {4*896}")
    if early:
        lds_spin("v7", F_PROG, ge=40+vtrig, four=24)
        pull(early)
    lds_spin("v7", F_DONE)
    gwait(kp)
    stamp(5)
    pf_ = pfirst
    def ploads():
        for u in range(4): a(f"buffer_load_dwordx4 {vr(176+4*u,4)}, v{49 if u == 3 else 48}, {WS}, s{16+u} offen sc1")
    for u in range(5):
        if u < 4:
            pull(4 * (u + 1 + ahead) if u < 3 else 24)
            a(f"s_waitcnt vmcnt({issued[0] - 4*(u+1)})")
            if u == 0: stamp(8)
            if u == 3: stamp(9)
            if u == 3 and pf_: ploads()
        if u > 0:
            a("s_waitcnt lgkmcnt(0)")
        if u < 4:
            for t in range(4):
                a(f"ds_read_b64_tr_b16 {vr(80+16*u+4*t,2)}, v16 offset:{4096*u+2048*(t>>1)+32*(t&1)}")
                a(f"ds_read_b64_tr_b16 {vr(82+16*u+4*t,2)}, v16 offset:{4096*u+2048*(t>>1)+32*(t&1)+256}")
        if u > 0:
            for t in range(4): mfma(20 + 4 * t, 40, 80 + 16 * (u - 1) + 4 * t, u == 1)
    a("v_cndmask_b32 v46, v20, v24, s[24:25]"); a("v_cndmask_b32 v47, v28, v32, s[24:25]")
    a("ds_write_b64 v50, v[46:47] offset:2048")
    a("s_waitcnt lgkmcnt(0)")
    a("s_barrier")
    a("ds_read2st64_b64 v[20:23], v51 offset0:4 offset1:5"); a("ds_read2st64_b64 v[24:27], v51 offset0:6 offset1:7")
    a(f"s_waitcnt vmcnt({4 if pf_ else 0}) lgkmcnt(0)")
    stamp(6)
    for t in range(8):
        a(f"ds_read_b64_tr_b16 {vr(144+4*t,2)}, v{64+(t>>1)} offset:{16384+8*(t&1)}")
        a(f"ds_read_b64_tr_b16 {vr(146+4*t,2)}, v{64+(t>>1)} offset:{16384+8*(t&1)+1024}")
        if t == 5: a("s_waitcnt lgkmcnt(4)")
    a("v_pk_add_f32 v[20:21], v[20:21], v[22:23]"); a("v_pk_add_f32 v[24:25], v[24:25], v[26:27]"); a("v_pk_add_f32 v[46:47], v[20:21], v[24:25]")
    a(f"v_mul_f32 v46, {f2u(-1/448):#x}, v46"); a(f"v_mul_f32 v47, {f2u(-1/448):#x}, v47")
    stamp(7)
    a(f"s_mov_b32 {sCNT}, 0")
    if pf_: a("s_branch L_pmid")
    lab("L_ppoll")
    ploads()
    bound()
    lab("L_pmid")
    for u in range(4):
        a(f"s_waitcnt vmcnt({3-u})")
        mfma(196, 176 + 4 * u, 40, u == 0)
        maxchain(1, range(176 + 4 * u, 180 + 4 * u), acc=u > 0)
        if u < spec - 1:
            for t in range(4): mfma(20 + 4 * t, 176 + 4 * u, 80 + 16 * u + 4 * t, u == 0)
    u0 = max(spec - 1, 0)
    if spec:
        for t in range(2): mfma(20 + 4 * t, 176 + 4 * u0, 80 + 16 * u0 + 4 * t, u0 == 0)
    a("v_cmp_eq_u32 vcc, -1, v1")
    a("s_and_b64 exec, exec, vcc"); a("s_cbranch_scc1 L_ppoll")
    a("s_mov_b64 exec, -1")
    stamp(10)
    rest = [(u, t) for u in range(u0, 4) for t in range(4)][2 if spec else 0:]
    fill = ["v_pk_add_f32 v[196:197], v[196:197], v[198:199]", None, "v_permlane32_swap_b32 v196, v197", "v_add_f32 v196, v196, v197",
            "v_mov_b32 v197, v196", None, "v_permlane16_swap_b32 v196, v197", "v_add_f32 v196, v196, v197", "v_mul_f32 v44, v196, v46", "v_mul_f32 v45, v196, v47"]
    start = max(len(rest) - 8, 0)
    for k, (u, t) in enumerate(rest):
        mfma(20 + 4 * t, 176 + 4 * u, 80 + 16 * u + 4 * t, u == 0)
        if k >= start and fill:
            f = fill.pop(0)
            if f: a(f)
    for f in fill:
        if f: a(f)
    for t in range(4): a(f"v_pk_add_f32 {vr(20+4*t,2)}, {vr(20+4*t,2)}, {vr(22+4*t,2)}")
    for t in range(4): a(f"v_permlane32_swap_b32 v{20+4*t}, v{21+4*t}")
    for t in range(4): a(f"v_add_f32 v{20+4*t}, v{20+4*t}, v{21+4*t}")
    a("v_permlane16_swap_b32 v20, v24"); a("v_permlane16_swap_b32 v28, v32")
    a("v_add_f32 v44, v44, v20"); a("v_add_f32 v45, v45, v28")
    a("v_add_f32 v44, v44, v24"); a("v_add_f32 v45, v45, v32")
    a("ds_write_b64 v50, v[44:45]")
    a("s_waitcnt lgkmcnt(0)")
    a("s_barrier")
    a("ds_read2st64_b64 v[20:23], v51 offset0:0 offset1:1"); a("ds_read2st64_b64 v[24:27], v51 offset0:2 offset1:3")
    a("s_waitcnt lgkmcnt(1)")
    a("v_pk_add_f32 v[20:21], v[20:21], v[22:23]")
    a("s_waitcnt lgkmcnt(0)")
    a("v_pk_add_f32 v[24:25], v[24:25], v[26:27]"); a("v_pk_add_f32 v[20:21], v[20:21], v[24:25]")
    a("v_mul_f32 v20, v20, v21")
    a("v_cvt_pk_bf16_f32 v20, v20, v20")
    a("ds_write_b16 v54, v20")
    for t in range(8): a(f"ds_read_b128 {vr(96+4*t,4)}, v{56+t}")
    if hint and hpos == 2:
        a("s_mov_b64 exec, 1"); store_local(f"buffer_store_dword v2, v14, {WS}, s33 offen"); a("s_mov_b64 exec, -1")
    for t in range(8):
        a(f"s_waitcnt lgkmcnt({7-t})")
        mfma(24, 144 + 4 * t, 96 + 4 * t, t == 0)
    a("s_mov_b32 exec_hi, s20")
    for j in range(4): a(f"v_min_u32 v{24+j}, -2, v{24+j}")
    a(f"buffer_store_dwordx4 v[24:27], v15, {WS}, s21 offen sc1")
    if hint and hpos == 1:
        a("s_mov_b64 exec, 1"); store_local(f"buffer_store_dword v2, v14, {WS}, s33 offen")
    stamp(11)
    a("s_branch L_exit" if stamps or pwg >= 0 else "s_endpgm")
    flush_far()

    page()
    lab("L_final")
    a(f"s_lshl2_add_u32 {sT0}, {sX}, {sI}"); a(f"s_sub_u32 s80, {sT0}, {FIN0}")
    srd(76, 34, 2*448*2)
    for r in (9, 10, 11, 17): a(f"v_mov_b32 v{r}, 0")
    a("s_mov_b32 s30, 0")
    a(f"s_cmp_lt_u32 {sI}, {REF0}"); a("s_cbranch_scc0 L_fin1")
    a(f"s_cmp_lt_u32 {sX}, 7"); a("s_cbranch_scc0 L_fin1")
    a(f"s_cmp_lt_u32 {sH}, 2"); a("s_cbranch_scc0 L_fin1")
    a("s_mov_b32 s30, 1")
    a(f"s_lshl_b32 s16, s80, 7"); a(f"s_add_u32 s16, s16, {WS_F:#x}")
    a(f"s_and_b32 {sT1}, s80, 1"); a(f"s_lshr_b32 {sT2}, s80, 1")
    a("v_lshrrev_b32 v8, 3, v0"); a("v_and_b32 v9, 7, v0")
    a(f"v_add_u32 v1, {FFN0}, v8"); a(f"v_mov_b32 v4, {sT2}"); a("v_cmp_eq_u32 vcc, 7, v8"); a("v_cndmask_b32 v1, v1, v4, vcc")
    a("v_lshl_add_u32 v1, v9, 5, v1"); a("v_lshlrev_b32 v4, 4, v1")
    a("v_lshlrev_b32 v10, 3, v9"); a("v_lshl_add_u32 v11, v8, 7, v10"); a("v_lshl_add_u32 v10, v12, 1, v10")
    a("v_mul_u32_u24 v8, 3584, v8"); a("v_lshl_add_u32 v9, v9, 4, v8")
    a(f"s_mul_i32 s23, {sT1}, 896"); a(f"s_lshl_b32 {sT3}, {sT2}, 6"); a(f"s_add_u32 s23, s23, {sT3}")
    a(f"buffer_load_ushort v16, v10, {OUT}, s23 offen")
    a(f"s_lshl_b32 s24, {sT2}, 10"); a(f"s_lshl_b32 {sT3}, {sT1}, 6"); a(f"s_add_u32 s24, s24, {sT3}"); a(f"s_add_u32 s24, s24, {WS_P:#x}")
    if p8: a(f"s_lshl_b32 {sT3}, {sX}, 14"); a(f"s_add_u32 s24, s24, {sT3}")
    for u in range(1, 7): a(f"s_add_u32 s{16+u}, s16, {8*3584*u}")
    a(f"s_lshl_b32 s26, {sT1}, 6"); a(f"s_add_u32 s26, s26, {sT3}"); a(f"s_add_u32 s26, s26, {WS_P:#x}")
    for u in range(1, 4): a(f"s_add_u32 s{26+u}, s26, {4096*u}")
    a("v_lshlrev_b32 v17, 7, v13"); a("v_lshl_add_u32 v17, v12, 4, v17")
    a(f"s_cmp_eq_u32 {sH}, 0"); a("s_cbranch_scc1 L_tagF")
    a("v_and_b32 v1, 7, v0"); a("v_lshlrev_b32 v1, 5, v1"); a("v_lshrrev_b32 v4, 3, v0"); a("v_add_u32 v1, v1, v4"); a("v_lshlrev_b32 v4, 4, v1")
    tagpoll("v4")
    a("v_add_u32 v4, 128, v4")
    lab("L_tagF")
    tagpoll("v4")
    lab("L_fin1")
    a(f"s_sub_u32 {sT1}, {sI}, {FIN0}"); a(f"s_lshl2_add_u32 {sT1}, {sT1}, {sH}")
    a(f"s_mul_i32 {sT2}, {sT1}, {30 if nodup else 41}")
    if nodup: a(f"s_add_u32 {sT2}, {sT2}, 512")
    a(f"v_add_u32 v1, {sT2}, v0"); a("v_min_u32 v1, 1791, v1")
    a("v_lshrrev_b32 v4, 2, v1"); a("v_mul_u32_u24 v4, 3584, v4"); a("v_and_b32 v1, 3, v1"); a("v_lshl_add_u32 v4, v1, 7, v4")
    if nodup >= 2:
        a(f"s_mul_i32 {sT2}, {sT1}, 12"); a(f"v_add_u32 v1, {sT2}, v0"); a("v_lshrrev_b32 v19, 2, v1"); a("v_mul_u32_u24 v19, 3584, v19")
        a("v_and_b32 v1, 3, v1"); a("v_lshl_add_u32 v19, v1, 7, v19")
    a(f"s_mul_i32 {sT2}, {sT1}, 36"); a(f"v_add_u32 v1, {sT2}, v0"); a("v_min_u32 v1, 1567, v1"); a("v_lshlrev_b32 v18, 7, v1")
    a(f"s_mul_i32 {sT2}, {sX}, 448"); a(f"s_and_b32 {sT2}, {sT2}, -128"); a(f"s_mul_i32 {sT3}, {sX}, {224*896}")
    wo_prefetch()
    if ftrig <= 32: lds_spin("v7", F_PROG, ge=8+ftrig+vtrig, four=24)
    else:
        lds_spin("v7", F_DONE); gwait(kf)
    a("s_mov_b32 exec_hi, 0x1ff")
    if nodup: a("s_mov_b64 exec, 0x3fffffff")
    if not nofw: a(f"buffer_load_dword v216, v4, {WG}, {sT2} offen"); a(f"buffer_load_dword v217, v4, {WU}, {sT2} offen")
    def rows0():
        a("s_mov_b64 exec, 0xfff")
        a(f"buffer_load_dword v214, v19, {WG}, {sT2} offen"); a(f"buffer_load_dword v215, v19, {WU}, {sT2} offen")
    if nodup == 2: rows0()
    a("s_mov_b64 exec, -1")
    if ftrig <= 32: lds_spin("v7", F_DONE)
    gwait(kd)
    a("s_mov_b32 exec_hi, 0xf")
    if not nofw: a(f"buffer_load_dword v218, v18, {WD}, {sT3} offen")
    if nodup == 3: rows0()
    a("s_mov_b64 exec, -1")
    a("s_cmp_eq_u32 s30, 1"); a("s_cbranch_scc0 L_exit")
    a(f"s_cmp_eq_u32 {sH}, 0"); a("s_cbranch_scc1 L_fin2")
    for r in range(4): a(f"v_mov_b32 v{60+r}, 0x3f803f80")
    lds_spin("v7", F_DONE, ge=2)
    poll([f"buffer_load_dwordx4 {vr(64+4*u,4)}, v17, {WS}, s{26+(u>>1)} offen offset:{2048*(u&1)}" for u in range(7)], range(64, 92))
    for u in range(7):
        mfma(92, 64 + 4 * u, 64 + 4 * u, u == 0); mfma(96, 64 + 4 * u, 60, u == 0)
    a("s_mov_b32 vcc_lo, 0x00ff00ff"); a("s_mov_b32 vcc_hi, 0xff00ff00")
    a("v_pk_add_f32 v[92:93], v[92:93], v[94:95]"); a("v_pk_add_f32 v[96:97], v[96:97], v[98:99]")
    a("v_add_f32 v92, v92, v93"); a("v_add_f32 v96, v96, v97")
    a("v_cndmask_b32 v92, 0, v92, vcc")
    for sh in (8, 4, 2, 1): dpp("v_add_f32", 92, 92, f"row_ror:{sh}")
    allreduce("v_add_f32", [92, 96], [93, 97], rors=())
    a(f"v_mul_f32 v96, {f2u(1/448):#x}, v96"); a(f"v_mul_f32 v92, {f2u(1/448):#x}, v92")
    a("v_fma_f32 v92, -v96, v96, v92"); a("v_max_f32 v92, 0, v92")
    a(f"v_add_f32 v92, {f2u(1e-5):#x}, v92"); a("v_rcp_f32 v57, v92")
    a(f"ds_write_b32 v7, v57 offset:{F_CNT2}"); a("v_mov_b32 v1, 3"); a(f"ds_write_b32 v7, v1 offset:{F_DONE}")
    stamp(11)
    a("s_branch L_exit")
    lab("L_fin2")
    stamp(7)
    poll([f"buffer_load_dwordx2 v[24:25], v11, {WS}, s24 offen"], [24, 25], sleep=rsl)
    if wb == 2:
        a(f"s_cmp_eq_u32 {sI}, {FIN0}"); a("s_cbranch_scc0 L_nowb"); a("buffer_wbl2 sc1"); lab("L_nowb")
    a("v_mov_b32 v1, 2"); a(f"ds_write_b32 v7, v1 offset:{F_DONE}")
    a("s_cmp_eq_u32 s80, 0"); a("s_cbranch_scc0 L_noep")
    a("s_mov_b64 exec, 1"); a(f"buffer_store_dwordx2 v[2:3], v14, {WS}, 0 offen sc1"); a("s_mov_b64 exec, -1")
    lab("L_noep")
    a("v_lshlrev_b32 v56, 16, v24"); a("v_and_b32 v57, 0xffff0000, v24"); a("v_lshlrev_b32 v58, 16, v25"); a("v_and_b32 v59, 0xffff0000, v25")
    stamp(10)
    def lanesum(r):
        a(f"v_permlane32_swap_b32 v{r}, v{r+2}"); a(f"v_permlane32_swap_b32 v{r+1}, v{r+3}")
        a(f"v_add_f32 v{r}, v{r}, v{r+2}"); a(f"v_add_f32 v{r+1}, v{r+1}, v{r+3}")
        a(f"v_permlane16_swap_b32 v{r}, v{r+1}"); a(f"v_add_f32 v{r}, v{r}, v{r+1}")
        dpp("v_add_f32", r, r, "row_ror:8")
    lanesum(56)
    if hint:
        a(f"s_lshl_b32 {sT0}, {sX}, 7"); a(f"s_add_u32 {sT0}, {sT0}, {WS_HN:#x}"); a("v_lshlrev_b32 v4, 2, v0")
        a("s_mov_b64 exec, 0xfffffff"); a(f"s_mov_b32 {sCNT}, 0")
        lab("L_hpoll")
        a(f"buffer_load_dword v1, v4, {WS}, {sT0} offen sc1")
        bound()
        a("s_waitcnt vmcnt(0)")
        if hcnt == 28:
            a("v_cmp_ne_u32 vcc, v1, v2"); a("s_cbranch_vccnz L_hpoll")
        else:
            a("v_cmp_eq_u32 vcc, v1, v2"); a(f"s_bcnt1_i32_b32 {sT1}, vcc_lo"); a(f"s_cmp_lt_u32 {sT1}, {hcnt}"); a("s_cbranch_scc1 L_hpoll")
        a("s_mov_b64 exec, -1")
    if fdelay: a(f"s_sleep {fdelay}")
    for u in range(7): a(f"buffer_load_dwordx4 {vr(24+4*u,4)}, v9, {WS}, s{16+u} offen sc1")
    lds_spin("v7", F_DONE, ge=3)
    a(f"ds_read_b32 v57, v7 offset:{F_CNT2}")
    a(f"s_mov_b32 {sCNT}, 0"); a("s_waitcnt lgkmcnt(0)"); a("s_branch L_fmid")
    lab("L_fpoll")
    for u in range(7): a(f"buffer_load_dwordx4 {vr(24+4*u,4)}, v9, {WS}, s{16+u} offen sc1")
    bound()
    lab("L_fmid")
    for u in range(1, 7):
        a(f"s_waitcnt vmcnt({6-u})")
        for j in (0, 2): a(f"v_pk_add_f32 {vr(20+j,2)}, {vr((24 if u == 1 else 20)+j,2)}, {vr(24+4*u+j,2)}")
    a("v_pk_add_f32 v[52:53], v[20:21], v[22:23]")
    a("v_cmp_u_f32 vcc, v52, v53")
    a("s_cbranch_vccnz L_fslow")
    lab("L_fok")
    a("s_mov_b64 exec, -1")
    stamp(12)
    lanesum(20)
    a("v_fma_f32 v20, v20, v57, v56")
    a("s_mov_b32 exec_lo, 0x00ff00ff"); a("s_mov_b32 exec_hi, 0x00ff00ff")
    a("v_cvt_pk_bf16_f32 v20, v20, v20")
    a(f"buffer_store_short v20, v10, {OUT}, s23 offen" + (" sc1" if outsc & 1 else "") + (" sc0" if outsc & 2 else "") + (" nt" if outsc & 4 else ""))
    a("s_branch L_exit" if stamps or pwg >= 0 else "s_endpgm")
    lab("L_fslow")
    maxchain(1, range(24, 52))
    a("v_cmp_eq_u32 vcc, -1, v1")
    a("s_and_b64 exec, exec, vcc"); a("s_cbranch_scc1 L_fpoll")
    a("s_branch L_fok")
    lab("L_exit")
    if stamps:
        a("s_mov_b64 exec, -1")
        a("s_waitcnt vmcnt(0) lgkmcnt(0)")
        a("s_memrealtime s[100:101]"); a("s_waitcnt lgkmcnt(0)"); a("s_mov_b32 s98, s100"); a("s_mov_b32 s99, s82")
        a(f"s_cmp_lt_u32 {sWAVE}, 4"); a("s_cbranch_scc0 L_dump")
        a(f"s_sub_u32 {sT0}, {sI}, {FFN0}"); a(f"s_cmp_lt_u32 {sT0}, 7"); a("s_cbranch_scc0 L_dump")
        a("s_barrier"); a("s_barrier")
        lab("L_dump")
        a("s_sleep 32"); a("s_memrealtime s[100:101]"); a("s_waitcnt lgkmcnt(0)"); a("s_sub_u32 s100, s100, s82")
        a("s_cmp_lt_u32 s100, 2500"); a("s_cbranch_scc1 L_dump")
        for k in range(16): a(f"v_mov_b32 v{20+k}, s{84+k}")
        a(f"s_lshl_b32 {sT0}, s2, 3"); a(f"s_add_u32 {sT0}, {sT0}, {sWAVE}"); a(f"s_lshl_b32 {sT0}, {sT0}, 6"); a(f"s_add_u32 {sT0}, {sT0}, {WS_STAMP:#x}")
        a("v_mov_b32 v1, 0"); a("s_mov_b64 exec, 1")
        for k in range(4): a(f"buffer_store_dwordx4 {vr(20+4*k,4)}, v1, {WS}, {sT0} offen offset:{16*k} sc1")
    if pa >= 0:
        a("s_cmp_eq_u32 s2, 255"); a("s_cbranch_scc0 L_end")
        a(f"s_cmp_eq_u32 {sWAVE}, 7"); a("s_cbranch_scc0 L_end")
        lab("L_pr0")
        a("s_memrealtime s[98:99]"); a("s_waitcnt lgkmcnt(0)"); a("s_sub_u32 s98, s98, s82")
        a("s_cmp_lt_u32 s98, 3500"); a("s_cbranch_scc1 L_pr0")
        a(f"s_mov_b32 s10, {WS_STAMP + 4*pa:#x}"); a(f"s_mov_b32 s11, {WS_STAMP + 4*pb:#x}")
        a(f"buffer_load_dword v20, v1, {WS}, s10 offen sc1"); a(f"buffer_load_dword v21, v1, {WS}, s11 offen sc1")
        a("s_waitcnt vmcnt(0)"); a("v_sub_u32 v20, v20, v21"); a("v_readfirstlane_b32 s10, v20")
        a("s_add_u32 s10, s10, 200"); a("s_and_b32 s10, s10, 0xfff"); a("s_lshl_b32 s10, s10, 3"); a("s_add_u32 s10, s10, 4000")
        lab("L_pr1")
        a("s_memrealtime s[98:99]"); a("s_waitcnt lgkmcnt(0)"); a("s_sub_u32 s98, s98, s82")
        a("s_cmp_lt_u32 s98, s10"); a("s_cbranch_scc1 L_pr1")
    if pwg >= 0:
        a(f"s_cmp_eq_u32 s2, {pwg}"); a("s_cbranch_scc0 L_end")
        a(f"s_cmp_eq_u32 {sWAVE}, {pwave}"); a("s_cbranch_scc0 L_end")
        if padto: a(f"s_mov_b32 s10, {padto}")
        else:
            a("s_waitcnt vmcnt(0)"); a("s_memrealtime s[98:99]"); a("s_waitcnt lgkmcnt(0)")
            a(f"s_sub_u32 s10, s98, s82"); a("s_and_b32 s10, s10, 0xfff"); a("s_lshl_b32 s10, s10, 3")
        lab("L_prl")
        a("s_memrealtime s[98:99]"); a("s_waitcnt lgkmcnt(0)"); a("s_sub_u32 s98, s98, s82")
        a("s_cmp_lt_u32 s98, s10"); a("s_cbranch_scc1 L_prl")
    lab("L_end")
    a("s_endpgm")
    body = pad(L)
    body += ['.section .rodata,"a"', ".p2align 6", f".amdhsa_kernel {NAME}_kernel",
             "  .amdhsa_next_free_vgpr 224", "  .amdhsa_next_free_sgpr 102", "  .amdhsa_accum_offset 224",
             "  .amdhsa_group_segment_fixed_size 0", "  .amdhsa_kernarg_size 96", "  .amdhsa_user_sgpr_count 2",
             "  .amdhsa_user_sgpr_kernarg_segment_ptr 1", "  .amdhsa_system_sgpr_workgroup_id_x 1",
             "  .amdhsa_float_denorm_mode_32 3", ".end_amdhsa_kernel"]
    return "\n".join(body) + "\n"

if __name__ == "__main__":
    kw = {}
    for arg in sys.argv[2:]:
        k, v = arg.split("="); kw[k] = int(v)
    open(sys.argv[1], "w").write(gen(**kw))
```

```python
import sys, struct
from asmlib import pad
NAME = "sequential_preLN__sliding_block_cached__glu_gated_bilinear__decode"

def f2u(x): return struct.unpack("<I", struct.pack("<f", x))[0]

WS_E, WS_RDY, WS_P, WS_ST, WS_Q, WS_O, WS_F = 0x0, 0x4000, 0xC0000, 0x10000, 0x20000, 0x40000, 0x80000
WS_HN = 0x6000
F_ALT = 0xC0000
Q_ALT = 0x100000
WS_STAMP = 0x100000
WS_SIZE = 0x200000
L_WQ = 0x20000
L_RED = 0x20000
L_RED2, L_R3, L_R3S, L_HH, L_G = 0x22000, 0x22400, 0x23400, 0x23800, 0x23A00
L_X, L_QS, L_PT, L_FL = 0x24000, 0x24E00, 0x25F00, 0x26700
LDS_SIZE = 0x26800
QP = 528
F_QRDY, F_CNT, F_DONE, F_CNT2, F_PROG, F_PRDY, F_M, F_ZERO = 0, 4, 8, 12, 16, 32, 64, 112
SPIN_LDS, SPIN_MEM = 1 << 21, 1 << 18
N_WO, FFN0, FIN0, REF0 = 14, 14, 21, 25
PATS = {1: ([13, 12, 15, 17, 20], [14, 16], [10, 11, 18, 19]),
        2: ([13, 11, 15, 17, 20], [12, 16], [10, 14, 18, 19]),
        3: ([13, 12, 17, 18, 20], [14, 16], [10, 11, 15, 19]),
        4: ([13, 10, 16, 17, 20], [12, 19], [11, 14, 15, 18]),
        5: ([13, 14, 15, 17, 20], [12, 16], [10, 11, 18, 19]),
        6: ([13, 10, 16, 17, 20], [11, 15], [12, 14, 18, 19]),
        7: ([13, 15, 20, 17, 19], [10, 11], [12, 14, 16, 18]),
        8: ([13, 11, 17, 19, 20], [14, 18], [10, 12, 15, 16]),
        9: ([13, 15, 17, 19, 20], [12, 18], [10, 11, 14, 16])}

def gen(window=6, vwin=7, w0=8, stamps=False, force_sc1=False, pat=9, qtrig=24, strig=26, wtrig=32, wptrig=32,
        pol=0, fpol=0, lst=0, b0=14, bn=7, f2=0, otouch=0, qalt=3, q3=0, q2=0, qrot=14, fbias=0, fw=8, ahead=2, opipe=0, wb=0, outsc=0, hsc=0, touch=1, hint=1, hcnt=24, ofirst=1, pfirst=1, vtrig=0, hpos=1, pskip=0, pdepth=1, nofw=0, nowo=0, wqgap=0, nodup=2, ftrig=33, kf=0, kp=0, kd=0, kw=0, early=2, psleep=0, fsleep=0, fdelay=0, rsl=0, osleep=0, p8=1,
        align=1, refp=0, reff=0, rsleep=1, rdepth=12, spec=1, lmask=-1, hmask=-1, pa=-1, pb=-1, pwg=-1, pwave=0, padto=0,
        patv=None):
    L = []
    def a(s): L.append("    " + s)
    def lab(s): L.append(s + ":")
    uid = [0]
    def new(p): uid[0] += 1; return f"L_{p}{uid[0]}"
    sWAVE, sX, sI, sB, sS, sWL, sH = "s3", "s4", "s5", "s6", "s7", "s8", "s9"
    sT0, sT1, sT2, sT3, sCNT, sSAME = "s10", "s11", "s12", "s13", "s14", "s15"
    K, V, WS, X, WQ, WO, WG, WU, WD, OUT = (f"s[{n}:{n+3}]" for n in range(40, 80, 4))
    PHI = "s83"
    vw = vwin or window
    LST = ("", " nt", " sc0", " sc0 nt")[lst]
    far = []
    def page():
        if align: L.append(".p2align 12")
    def srd(n, lo, size):
        a(f"s_mov_b32 s{n}, s{lo}"); a(f"s_mov_b32 s{n+1}, s{lo+1}")
        a(f"s_mov_b32 s{n+2}, {size:#x}"); a(f"s_mov_b32 s{n+3}, 0x20000")
    side = ["L"]
    def stamp(k):
        if stamps and ((lmask if side[0] == "L" else hmask) >> k) & 1:
            a("s_memrealtime s[100:101]"); a("s_waitcnt lgkmcnt(0)"); a(f"s_mov_b32 s{84+k}, s100")
    def vr(b, n): return f"v[{b}:{b+n-1}]"
    def mfma(d, x, y, first): a(f"v_mfma_f32_16x16x32_bf16 {vr(d,4)}, {vr(x,4)}, {vr(y,4)}, " + ("0" if first else vr(d,4)))
    def bound():
        a(f"s_add_u32 {sCNT}, {sCNT}, 1"); a(f"s_cmp_gt_u32 {sCNT}, {SPIN_MEM}"); a("s_cbranch_scc1 L_exit")
    def lds_spin(vaddr, off, dst=sT0, four=None, ge=1):
        l, d = new("spin"), new("got")
        a(f"s_mov_b32 {sCNT}, 0")
        lab(l)
        if four is None: a(f"ds_read_b32 v1, {vaddr} offset:{off}")
        else: a(f"ds_read_b128 {vr(four,4)}, {vaddr} offset:{off}")
        a(f"s_add_u32 {sCNT}, {sCNT}, 1")
        a("s_waitcnt lgkmcnt(0)")
        if four is not None:
            a(f"v_min3_u32 v1, v{four}, v{four+1}, v{four+2}"); a(f"v_min_u32 v1, v1, v{four+3}")
        a(f"v_readfirstlane_b32 {dst}, v1")
        a(f"s_cmp_ge_u32 {dst}, {ge}"); a(f"s_cbranch_scc1 {d}")
        a(f"s_cmp_gt_u32 {sCNT}, {SPIN_LDS}"); a("s_cbranch_scc1 L_exit")
        a("s_sleep 1"); a(f"s_branch {l}")
        lab(d)
    def dpp(op, d, s, ctl): a(f"{op}_dpp v{d}, v{s}, v{s} {ctl} row_mask:0xf bank_mask:0xf")
    def allreduce(op, regs, tmps, swaps=("v_permlane16_swap_b32", "v_permlane32_swap_b32"), rors=(8, 4, 2, 1)):
        for sh in rors:
            for r in regs: dpp(op, r, r, f"row_ror:{sh}")
        for sw in swaps:
            for r, t in zip(regs, tmps): a(f"v_mov_b32 v{t}, v{r}")
            for r, t in zip(regs, tmps): a(f"{sw} v{r}, v{t}")
            for r, t in zip(regs, tmps): a(f"{op} v{r}, v{r}, v{t}")
    def store_local(t):
        if force_sc1:
            a(t + " sc1"); return
        l1, l2 = new("far"), new("st")
        a(f"s_cmp_eq_u32 {sSAME}, 2"); a(f"s_cbranch_scc0 {l1}")
        a(t + LST)
        lab(l2)
        far.append((l1, t, l2))
    def flush_far():
        for l1, t, l2 in far:
            lab(l1); a(t + " sc1"); a(f"s_branch {l2}")
        far.clear()
    def maxchain(dst, regs, acc=False):
        rest = list(regs)
        if not acc:
            if len(rest) == 2:
                a(f"v_max_u32 v{dst}, v{rest[0]}, v{rest[1]}"); return
            a(f"v_max3_u32 v{dst}, v{rest[0]}, v{rest[1]}, v{rest[2]}"); rest = rest[3:]
        while rest:
            if len(rest) >= 2:
                a(f"v_max3_u32 v{dst}, v{dst}, v{rest[0]}, v{rest[1]}"); rest = rest[2:]
            else:
                a(f"v_max_u32 v{dst}, v{dst}, v{rest[0]}"); rest = []
    def poll(loads, regs, tmp=1, sleep=0):
        l = new("poll")
        a(f"s_mov_b32 {sCNT}, 0")
        lab(l)
        if sleep: a(f"s_sleep {sleep}")
        for t in loads: a(t + " sc1")
        bound()
        a("s_waitcnt vmcnt(0)")
        maxchain(tmp, regs)
        a(f"v_cmp_eq_u32 vcc, -1, v{tmp}")
        a("s_and_b64 exec, exec, vcc")
        a(f"s_cbranch_scc1 {l}")
        a("s_mov_b64 exec, -1")
    def tagpoll(voff):
        l = new("tag")
        a(f"s_mov_b32 {sCNT}, 0"); a(f"s_mov_b32 {sT0}, {WS_RDY:#x}")
        lab(l)
        a(f"buffer_load_dwordx2 v[24:25], {voff}, {WS}, {sT0} offen sc1")
        bound()
        a("s_waitcnt vmcnt(0)")
        a("v_xor_b32 v24, v24, v2"); a("v_xor_b32 v25, v25, v3"); a("v_or_b32 v24, v24, v25")
        a("v_cmp_ne_u32 vcc, 0, v24")
        a("s_and_b64 exec, exec, vcc"); a(f"s_cbranch_scc1 {l}")
        a("s_mov_b64 exec, -1")
    def refresher(voff, soff):
        l = new("ref")
        a("v_mov_b32 v20, -1"); a(f"s_mov_b32 {sCNT}, 0")
        lab(l)
        a(f"buffer_load_dword v20, {voff}, {WS}, {soff} offen sc1")
        bound()
        a(f"s_waitcnt vmcnt({rdepth-1})")
        a(f"s_sleep {rsleep}")
        a("v_cmp_eq_u32 vcc, -1, v20")
        a("s_and_b64 exec, exec, vcc"); a(f"s_cbranch_scc1 {l}")
        a("s_branch L_exit")
    def gwait(k):
        if not k: return
        l, d = new("gw"), new("gd")
        a("v_bfe_u32 v1, v0, 4, 1"); a("v_lshlrev_b32 v1, 14, v1"); a("v_lshl_add_u32 v221, v13, 4, v1")
        a(f"s_lshl_b32 s31, {sX}, 15"); a(f"s_add_u32 s31, s31, {WS_O:#x}"); a(f"s_mov_b32 {sCNT}, 0")
        lab(l)
        a(f"buffer_load_dword v222, v221, {WS}, s31 offen sc1")
        bound()
        a("s_waitcnt vmcnt(0)")
        a("v_cmp_ne_u32 vcc, -1, v222"); a(f"s_bcnt1_i32_b32 {sT0}, vcc_lo")
        a(f"s_cmp_ge_u32 {sT0}, {k}"); a(f"s_cbranch_scc1 {d}")
        a("s_sleep 2"); a(f"s_branch {l}")
        lab(d)
    def dma(voff, srd_, soff):
        if not (nowo if srd_ == WO else nofw): a(f"buffer_load_dwordx4 {voff}, {srd_}, {soff} offen lds")
        a("s_add_u32 m0, m0, 1024")
    def p_prod(dst, tmp):
        a(f"s_and_b32 {dst}, s2, 63"); a(f"s_lshl_b32 {dst}, {dst}, 7"); a(f"s_lshr_b32 {tmp}, s2, 6"); a(f"s_lshl_b32 {tmp}, {tmp}, 16")
        a(f"s_add_u32 {dst}, {dst}, {tmp}"); a(f"s_add_u32 {dst}, {dst}, {WS_P + (pol << 13):#x}")
    def p_copy(dst, tmp):
        a(f"s_and_b32 {dst}, {sX}, 3"); a(f"s_lshr_b32 {tmp}, {sX}, 2"); a(f"s_xor_b32 {tmp}, {tmp}, {pol}")
        a(f"s_lshl1_add_u32 {dst}, {dst}, {tmp}"); a(f"s_lshl_b32 {dst}, {dst}, 13"); a(f"s_add_u32 {dst}, {dst}, {WS_P:#x}")
    def f_prod(dst, tmp):
        a(f"s_and_b32 {dst}, {PHI}, 3"); a(f"s_lshl_b32 {dst}, {dst}, 11"); a(f"s_lshr_b32 {tmp}, {PHI}, 2"); a(f"s_lshl_b32 {tmp}, {tmp}, 14")
        a(f"s_add_u32 {dst}, {dst}, {tmp}"); a(f"s_add_u32 {dst}, {dst}, {WS_F + (fpol << 13):#x}")
    def maketag():
        a("v_add_u32 v2, 0x7f4a7c15, v2"); a("v_add_u32 v3, 0x9e3779b0, v3"); a("v_and_b32 v3, -16, v3")

    L.append(f"; @launch grid=(256,1,1) block=(512,1,1) lds={LDS_SIZE}")
    L.append('.amdgcn_target "amdgcn-amd-amdhsa--gfx950"')
    L.append(".text"); L.append(f".globl {NAME}_kernel"); page(); L.append(".p2align 8")
    L.append(f".type {NAME}_kernel,@function"); lab(f"{NAME}_kernel")
    a("s_cmp_ge_u32 s2, 256"); a("s_cbranch_scc1 L_end0")
    a("s_load_dwordx16 s[16:31], s[0:1], 0")
    a("s_load_dwordx8 s[32:39], s[0:1], 64")
    if stamps or pwg >= 0:
        for k in range(16): a(f"s_mov_b32 s{84+k}, 0")
        a("s_memrealtime s[82:83]")
    a("v_lshrrev_b32 v1, 6, v0")
    a("v_and_b32 v0, 63, v0")
    a(f"v_readfirstlane_b32 {sWAVE}, v1")
    a("v_and_b32 v2, 31, v0"); a(f"v_mov_b32 v7, {L_FL:#x}"); a("v_lshl_add_u32 v3, v2, 2, v7"); a("v_mov_b32 v4, 0")
    a("ds_write_b32 v3, v4")
    a(f"s_and_b32 {sX}, s2, 7"); a(f"s_lshr_b32 {sI}, s2, 3")
    a(f"s_lshr_b32 {sB}, {sI}, 4"); a(f"s_and_b32 {sS}, {sI}, 15")
    a(f"s_lshl_b32 {sWL}, {sX}, 5"); a(f"s_add_u32 {sWL}, {sWL}, {sI}")
    a(f"s_and_b32 {sH}, {sWAVE}, 3")
    sQ = sI
    if qrot:
        sQ = "s81"; a(f"s_add_u32 {sQ}, {sI}, {qrot}"); a(f"s_and_b32 {sQ}, {sQ}, 31")
    a(f"v_lshl_add_u32 v6, {sH}, 2, v7")
    a("v_mov_b32 v5, 1")
    a(f"s_cmp_ge_u32 {sWAVE}, 4"); a("s_cbranch_scc1 L_helper")

    tb, hb, sb = patv or PATS[pat]
    PAIR = 1 << tb[0]
    def toff(r): return sum(((r >> j) & 1) << tb[j + 1] for j in range(4))
    a("v_lshrrev_b32 v1, 3, v0"); a("v_and_b32 v4, 7, v0"); a("v_lshlrev_b32 v4, 4, v4"); a("v_lshl_add_u32 v16, v1, 13, v4")
    a(f"s_lshr_b32 {sT0}, {sQ}, 3"); a(f"s_lshl2_add_u32 {sT0}, {sH}, {sT0}"); a(f"s_lshl_b32 {sT0}, {sT0}, 18")
    a(f"s_and_b32 {sT1}, {sQ}, 7"); a(f"s_lshl3_add_u32 {sT1}, {sX}, {sT1}"); a(f"s_lshl_b32 {sT1}, {sT1}, 7")
    a(f"s_add_u32 {sT3}, {sT0}, {sT1}")
    a(f"s_lshl_b32 {sT1}, {sH}, 12"); a(f"s_add_u32 m0, {sT1}, {L_WQ:#x}")
    a("s_mov_b32 s58, 0x380000"); a("s_mov_b32 s59, 0x20000"); a("s_mov_b32 s42, 0x10000000"); a("s_mov_b32 s43, 0x20000")
    a("v_lshrrev_b32 v1, 5, v0"); a("v_xor_b32 v2, v2, v1"); a("v_lshlrev_b32 v2, 4, v2")
    a("v_lshl_add_u32 v8, v1, 9, v2")
    a(f"v_add_u32 v9, {PAIR - 1024}, v8"); a("v_xor_b32 v9, 32, v9")
    a(f"s_lshl3_add_u32 {sT0}, {sB}, {sX}"); a(f"s_lshl_b32 {sT0}, {sT0}, 24")
    a(f"s_add_u32 s80, {sT0}, 0xE00000")
    for reg, bits in ((sH, hb), (sS, sb)):
        j = 0
        while j < len(bits):
            k = j
            while k + 1 < len(bits) and bits[k + 1] == bits[k] + 1: k += 1
            a(f"s_bfe_u32 {sT0}, {reg}, {((k - j + 1) << 16) | j:#x}"); a(f"s_lshl_b32 {sT0}, {sT0}, {bits[j]}"); a(f"s_add_u32 s80, s80, {sT0}")
            j = k + 1
    a(f"s_lshl_b32 {sT2}, {sH}, 15")
    a("s_waitcnt lgkmcnt(0)")
    stamp(9)
    a("s_mov_b64 s[56:57], s[22:23]"); a("s_mov_b64 s[40:41], s[18:19]")
    landed = 0; sig = False
    order = []; kq = 0
    for n in range(33):
        while kq < 4 and n >= max(kq * wqgap, q3 if kq == 3 else q2 if kq == 2 else 0):
            order.append(("q", kq)); kq += 1
        if n < 32: order.append(("k", n))
    lastq = max(i for i, o in enumerate(order) if o[0] == "q") + 1
    prev = "q"
    for idx, (kind, n) in enumerate(order):
        if kind == "q":
            if n: a(f"s_add_u32 m0, {sT1}, {L_WQ + 1024*n:#x}"); a(f"s_add_u32 {sT3}, {sT3}, 65536")
            a(f"buffer_load_dwordx4 v16, {WQ}, {sT3} offen nt lds")
        else:
            r, h = n >> 1, n & 1
            if h == 0 or prev == "q": a(f"s_add_u32 m0, {sT2}, {2048*r}")
            if h == 0: a(f"s_add_u32 {sT0}, s80, {toff(r):#x}")
            a(f"buffer_load_dwordx4 v{8+2*(r&3)+h}, {K}, {sT0} offen offset:{1024*h} nt lds")
            if n == 1:
                for k in range(2, 8): a(f"v_xor_b32 v{8+k}, {32*(k&~1)}, v{8+(k&1)}")
        prev = kind
        cnt = idx + 1
        w = w0 if cnt < w0 else window
        if cnt - (w - 1) > landed:
            first = landed == 0
            if first: a("s_barrier")
            landed = cnt - (w - 1); a(f"s_waitcnt vmcnt({w-1})")
            if first: stamp(6)
        if landed >= lastq and not sig:
            sig = True; a(f"ds_write_b32 v6, v5 offset:{F_PROG}")
            stamp(7)
        if idx - 3 == qtrig:
            a("v_mov_b32 v17, 2"); a(f"ds_write_b32 v6, v17 offset:{F_PROG}")
        if idx == 19: stamp(8)
        if idx == 24:
            srd(44, 20, 0x10000000); srd(48, 38, WS_SIZE)
            a("v_bfe_u32 v1, v0, 4, 1"); a("v_and_b32 v2, 15, v0"); a("v_lshlrev_b32 v2, 4, v2"); a("v_lshl_add_u32 v16, v1, 9, v2")
            a("v_lshrrev_b32 v1, 5, v0"); a(f"v_lshl_add_u32 v16, v1, {tb[0]}, v16")
    stamp(0)
    n = 0
    for r in range(16):
        a(f"s_add_u32 {sT0}, s80, {toff(r):#x}")
        for h in range(2):
            a(f"buffer_load_dwordx4 {vr(64+8*r+4*h,4)}, v16, {V}, {sT0} offen offset:{256*h} nt")
            n += 1
            if fbias and n == fbias:
                a(f"s_sub_u32 {sT1}, {sI}, {b0}"); a(f"s_cmp_lt_u32 {sT1}, {bn}"); a("s_cselect_b64 vcc, 0, -1")
            if fbias and fbias <= n < 32:
                a(f"s_waitcnt vmcnt({fw-1})"); a(f"s_cbranch_vccz L_fb{n}"); a(f"s_waitcnt vmcnt({vw-1})"); lab(f"L_fb{n}")
            elif n < 32: a(f"s_waitcnt vmcnt({(window if n < window else vw)-1})")
            if n in (window - 1, wtrig, wptrig, strig, ftrig, 32):
                a(f"v_mov_b32 v9, {8+n}"); a(f"ds_write_b32 v6, v9 offset:{F_PROG}")
            if n == window - 1: stamp(1)
            if n == window + 1:
                a("v_and_b32 v1, 1, v0"); a("v_lshlrev_b32 v1, 4, v1"); a("v_mov_b32 v2, 0xffff"); a("v_lshlrev_b32 v2, v1, v2")
                a("v_bfe_u32 v1, v0, 1, 2")
                for q in range(4):
                    a(f"v_cmp_eq_u32 vcc, {q}, v1"); a(f"v_cndmask_b32 v{20+q}, 0, v2, vcc")
                a("v_bfe_u32 v1, v0, 3, 1"); a("v_lshlrev_b32 v1, 8, v1"); a("v_lshrrev_b32 v2, 4, v0"); a("v_lshl_add_u32 v1, v2, 6, v1")
                a(f"s_lshl_b32 {sT1}, {sH}, 9"); a(f"s_add_u32 {sT1}, {sT1}, {L_PT:#x}"); a(f"v_add_u32 v17, {sT1}, v1")
                a(f"s_lshl_b32 {sT1}, {sH}, 11"); a(f"s_add_u32 {sT1}, {sT1}, {L_RED:#x}")
                a("v_lshlrev_b32 v1, 4, v0"); a(f"v_add_u32 v18, {sT1}, v1")
            if n == window + 3:
                a("v_and_b32 v1, 47, v0"); a("v_lshlrev_b32 v1, 4, v1"); a("v_bfe_u32 v2, v0, 4, 1"); a("v_lshl_add_u32 v1, v2, 10, v1")
                a(f"v_add_u32 v19, {L_RED:#x}, v1")
                a("v_lshrrev_b32 v1, 5, v0"); a("v_lshl_add_u32 v4, v1, 4, v7"); a(f"v_lshl_add_u32 v8, {sH}, 2, v4")
                a("v_lshlrev_b32 v3, 8, v0")
                a(f"s_lshr_b32 {sT3}, {sWL}, 4"); a(f"s_lshl_b32 {sT3}, {sT3}, 14"); a(f"s_lshl4_add_u32 {sT3}, {sS}, {sT3}")
                a(f"s_add_u32 {sT3}, {sT3}, {WS_O:#x}")
    stamp(2)
    lds_spin("v7", F_PRDY, four=24)
    for j in range(4): a(f"ds_read_b128 {vr(24+4*j,4)}, v17 offset:{16*j}")
    a(f"ds_read_b128 v[56:59], v4 offset:{F_M}"); a(f"ds_read_b32 v60, v8 offset:{F_M}")
    a(f"ds_read_b32 v2, v7 offset:{F_QRDY}")
    a("s_waitcnt lgkmcnt(0)")
    a(f"v_readfirstlane_b32 {sSAME}, v2")
    stamp(3)
    def amask(r):
        for j in range(4): a(f"v_and_b32 v{40+4*(r&1)+j}, v{24+r}, v{20+j}")
    amask(0)
    a("v_max3_f32 v56, v56, v57, v58"); a("v_max_f32 v56, v56, v59"); a("v_sub_f32 v56, v60, v56"); a("v_exp_f32 v56, v56")
    for r in range(16):
        if r < 15: amask(r + 1)
        if r == 1: a("v_mov_b32 v57, v56")
        for h in range(2):
            if 31 - 2 * r - h < max(vw, fw if fbias else 0): a(f"s_waitcnt vmcnt({31-2*r-h})")
            mfma(48 + 4 * h, 40 + 4 * (r & 1), 64 + 8 * r + 4 * h, r == 0)
    if vtrig: a("v_mov_b32 v9, 41"); a(f"ds_write_b32 v6, v9 offset:{F_PROG}")
    stamp(4)
    for h in range(2):
        for j in (0, 2): a(f"v_pk_mul_f32 {vr(48+4*h+j,2)}, {vr(48+4*h+j,2)}, v[56:57]")
        a(f"ds_write_b128 v18, {vr(48+4*h,4)} offset:{1024*h}")
    a("s_mov_b64 exec, 1")
    a(f"ds_add_rtn_u32 v1, v7, v5 offset:{F_CNT}")
    a("s_mov_b64 exec, -1")
    for z in range(2):
        for w in range(4): a(f"ds_read_b128 {vr(64+16*z+4*w,4)}, v19 offset:{2048*w+256*z}")
    a("s_waitcnt lgkmcnt(8)")
    a(f"v_readfirstlane_b32 {sT0}, v1")
    a(f"s_cmp_eq_u32 {sT0}, 3"); a("s_cbranch_scc0 L_exitL")
    for z in range(2):
        b0 = 64 + 16 * z
        a(f"s_waitcnt lgkmcnt({4-4*z})")
        for j in (0, 2):
            a(f"v_pk_add_f32 {vr(b0+j,2)}, {vr(b0+j,2)}, {vr(b0+4+j,2)}")
            a(f"v_pk_add_f32 {vr(b0+8+j,2)}, {vr(b0+8+j,2)}, {vr(b0+12+j,2)}")
        for j in (0, 2): a(f"v_pk_add_f32 {vr(b0+j,2)}, {vr(b0+j,2)}, {vr(b0+8+j,2)}")
        a(f"v_cvt_pk_bf16_f32 v{48+2*z}, v{b0}, v{b0+1}"); a(f"v_cvt_pk_bf16_f32 v{49+2*z}, v{b0+2}, v{b0+3}")
        a(f"v_min_u32 v{48+2*z}, -2, v{48+2*z}"); a(f"v_min_u32 v{49+2*z}, -2, v{49+2*z}")
    store_local(f"buffer_store_dwordx4 v[48:51], v3, {WS}, {sT3} offen")
    a(f"ds_write_b32 v7, v5 offset:{F_DONE}")
    stamp(5)
    lab("L_exitL")
    if stamps or pwg >= 0: a("s_branch L_exit")
    lab("L_end0")
    a("s_endpgm")
    flush_far()

    page()
    lab("L_helper")
    side[0] = "H"
    a("v_lshrrev_b32 v12, 4, v0"); a("v_and_b32 v13, 15, v0")
    a("v_mov_b32 v14, 0"); a("v_lshlrev_b32 v15, 4, v0")
    a("v_bfe_u32 v1, v0, 2, 2"); a("v_lshl_add_u32 v10, v12, 3, v1"); a("v_and_b32 v11, 3, v0")
    a("s_getreg_b32 s80, hwreg(HW_REG_XCC_ID, 0, 4)")
    a(f"s_mov_b32 m0, {L_X:#x}")
    a(f"s_mul_i32 {sT3}, {sX}, 7"); a(f"s_add_u32 {sT3}, {sT3}, {sI}")
    a("s_waitcnt lgkmcnt(0)")
    a("s_barrier")
    a(f"s_sub_u32 {PHI}, {sT3}, {FFN0}")
    srd(48, 38, WS_SIZE); srd(52, 16, 2*448*2)
    a(f"buffer_load_dwordx2 v[2:3], v14, {WS}, 0 offen sc1")
    a(f"s_cmp_eq_u32 {sH}, 0"); a("s_cbranch_scc1 L_q")
    a(f"s_cmp_eq_u32 {sH}, 1"); a("s_cbranch_scc0 L_noclr")
    a(f"s_cmp_lt_u32 {sI}, {FIN0}"); a("s_cbranch_scc0 L_noclr")
    for r in range(4): a(f"v_mov_b32 v{28+r}, -1")
    a(f"s_cmp_lt_u32 {sI}, {N_WO}"); a("s_cbranch_scc1 L_clrP")
    f_prod(sT0, sT1); a(f"s_xor_b32 {sT1}, {sT0}, 0x2000")
    for so, k in ((sT0, 0), (sT0, 1024), (sT1, 0), (sT1, 512)): a(f"buffer_store_dwordx4 v[28:31], v15, {WS}, {so} offen offset:{k} sc1")
    if f2:
        a(f"s_add_u32 {sT0}, {sT0}, {F_ALT:#x}")
        for k in (0, 1024, 2048, 2560): a(f"buffer_store_dwordx4 v[28:31], v15, {WS}, {sT0} offen offset:{k} sc1")
    a("s_branch L_clrd")
    lab("L_clrP")
    a("v_lshrrev_b32 v1, 3, v0"); a("v_and_b32 v4, 7, v0"); a("v_lshlrev_b32 v4, 4, v4"); a("v_lshl_add_u32 v4, v1, 13, v4")
    p_prod(sT0, sT1); a(f"s_andn2_b32 {sT0}, {sT0}, 0x2000")
    a(f"buffer_store_dwordx4 v[28:31], v4, {WS}, {sT0} offen sc1")
    a("s_mov_b64 exec, -1")
    lab("L_clrd")
    a(f"s_lshl_b32 {sT0}, {sWL}, 4"); a(f"s_add_u32 {sT0}, {sT0}, {WS_RDY:#x}")
    a("s_waitcnt vmcnt(0)")
    maketag()
    a("s_mov_b64 exec, 1")
    a(f"buffer_store_dwordx2 v[2:3], v14, {WS}, {sT0} offen sc1")
    a("s_mov_b64 exec, -1")
    a("s_branch L_qdone")
    lab("L_noclr")
    a("s_waitcnt vmcnt(0)")
    maketag()
    a("s_branch L_qdone")
    lab("L_q")
    a(f"buffer_load_dwordx4 v15, {X}, 0 offen lds")
    a("s_mov_b32 exec_hi, 0xffff")
    a(f"buffer_load_dwordx4 v15, {X}, 0 offen offset:1024 lds")
    a("s_mov_b32 exec_hi, 0xffffff")
    for r in range(4): a(f"v_mov_b32 v{20+r}, 0x3f803f80")
    for r in range(4): a(f"v_mov_b32 v{24+r}, 0")
    a(f"v_add_u32 v1, {L_X:#x}, v15")
    a("ds_write_b128 v1, v[20:23] offset:1792"); a("ds_write_b128 v1, v[24:27] offset:2688")
    a("s_mov_b64 exec, -1")
    a("v_mul_u32_u24 v1, 896, v11"); a("v_lshl_add_u32 v1, v12, 4, v1"); a(f"v_add_u32 v4, {L_X:#x}, v1")
    a(f"s_lshr_b32 {sT0}, {sQ}, 3"); a(f"s_lshl_b32 {sT1}, {sT0}, 6"); a(f"v_add_u32 v8, {sT1}, v4")
    a(f"v_mov_b32 v9, {L_X + 2688 - 768:#x}"); a(f"s_cmp_ge_u32 {sT0}, 2"); a("s_cselect_b64 vcc, -1, 0"); a("v_cndmask_b32 v9, v8, v9, vcc")
    a("v_lshlrev_b32 v1, 7, v10"); a("v_lshl_add_u32 v1, v11, 3, v1"); a(f"v_add_u32 v16, {L_WQ:#x}, v1")
    a("s_waitcnt vmcnt(0)")
    stamp(0)
    for u in range(14): a(f"ds_read_b128 {vr(64+4*u,4)}, v4 offset:{64*u}")
    maketag()
    for u in range(14):
        a(f"s_waitcnt lgkmcnt({13-u})")
        mfma(20, 64 + 4 * u, 64 + 4 * u, u == 0)
    for u in range(4): a(f"ds_read_b128 {vr(120+4*u,4)}, v{9 if u == 3 else 8} offset:{256*u}")
    a("v_and_b32 v1, 1, v0"); a("v_cmp_eq_u32 vcc, 1, v1"); a("v_cndmask_b32 v20, v20, v21, vcc")
    a(f"v_mul_f32 v44, {f2u(1/448):#x}, v22")
    a(f"v_mul_f32 v45, {f2u(1/448):#x}, v20")
    a("v_fma_f32 v45, -v44, v44, v45"); a("v_max_f32 v45, 0, v45")
    a(f"v_add_f32 v45, {f2u(1e-5):#x}, v45"); a("v_rsq_f32 v45, v45")
    lds_spin("v7", F_PROG, four=24)
    stamp(13)
    for u in range(4):
        for t in range(4):
            a(f"ds_read_b64_tr_b16 {vr(136+16*u+4*t,2)}, v16 offset:{4096*u+32*t}")
            a(f"ds_read_b64_tr_b16 {vr(138+16*u+4*t,2)}, v16 offset:{4096*u+32*t+512}")
        a("s_waitcnt lgkmcnt(0)")
        for t in range(4): mfma(24 + 4 * t, 136 + 16 * u + 4 * t, 120 + 4 * u, u == 0)
    a("v_lshrrev_b32 v1, 2, v13")
    for t in range(1, 4):
        a(f"v_cmp_eq_u32 vcc, {t}, v1")
        for j in range(4): a(f"v_cndmask_b32 v{24+j}, v{24+j}, v{24+4*t+j}, vcc")
    for j in range(4): a(f"v_mov_b32_dpp v{32+j}, v{24+j} quad_perm:[2,2,2,2] row_mask:0xf bank_mask:0xf")
    for j in range(4): a(f"v_fma_f32 v{24+j}, -v44, v{32+j}, v{24+j}")
    for j in range(4): a(f"v_mul_f32 v{24+j}, v{24+j}, v45")
    a("v_mov_b32 v20, v2"); a("v_or_b32 v21, s80, v3")
    a("v_cvt_pk_bf16_f32 v22, v24, v25"); a("v_cvt_pk_bf16_f32 v23, v26, v27")
    a("v_lshlrev_b32 v1, 6, v1"); a("v_lshl_add_u32 v1, v12, 4, v1"); a("v_lshl_add_u32 v1, v11, 8, v1")
    a(f"s_lshl_b32 {sT0}, {sX}, 5"); a(f"s_add_u32 {sT0}, {sT0}, {sQ}"); a(f"s_lshl_b32 {sT0}, {sT0}, 9"); a(f"s_add_u32 {sT0}, {sT0}, {WS_Q:#x}")
    a("s_mov_b32 exec_lo, 0x33333333"); a("s_mov_b32 exec_hi, 0x33333333")
    a(f"buffer_store_dwordx4 v[20:23], v1, {WS}, {sT0} offen" + LST); a(f"s_xor_b32 {sT0}, {sT0}, {Q_ALT:#x}")
    a(f"buffer_store_dwordx4 v[20:23], v1, {WS}, {sT0} offen sc1")
    a("s_mov_b64 exec, -1")
    stamp(1)
    lds_spin("v6", F_PROG, ge=2)
    a("v_lshlrev_b32 v1, 4, v13"); a("v_lshl_add_u32 v4, v12, 9, v1")
    a(f"s_lshl_b32 {sT0}, {sX}, 14"); a(f"s_lshl_b32 {sT1}, {sB}, 8"); a(f"s_add_u32 {sT0}, {sT0}, {sT1}"); a(f"s_add_u32 {sT0}, {sT0}, {WS_Q:#x}")
    a(f"s_add_u32 {sT1}, {sT0}, 4096"); a(f"s_add_u32 {sT2}, {sT0}, 8192"); a(f"s_add_u32 {sT3}, {sT0}, 12288")
    a(f"s_mov_b32 {sCNT}, 0")
    lab("L_qpoll")
    for u in range(8): a(f"buffer_load_dwordx4 {vr(64+4*u,4)}, v4, {WS}, {(sT0,sT1,sT2,sT3)[u>>1]} offen offset:{2048*(u&1)} sc1")
    bound()
    if qalt == 1:
        for r in (sT0, sT1, sT2, sT3): a(f"s_xor_b32 {r}, {r}, {Q_ALT:#x}")
    else:
        a(f"s_cmp_eq_u32 {sCNT}, {qalt}"); a(f"s_cselect_b32 s26, {Q_ALT:#x}, 0")
        for r in (sT0, sT1, sT2, sT3): a(f"s_xor_b32 {r}, {r}, s26")
    a("v_mov_b32 v32, 0"); a("v_mov_b32 v33, 0")
    a("s_waitcnt vmcnt(0)")
    for u in range(8):
        a(f"v_xor_b32 v34, v{64+4*u}, v2"); a(f"v_xor_b32 v35, v{65+4*u}, v21")
        a("v_or_b32 v32, v32, v34"); a("v_or_b32 v33, v33, v35")
    a("v_and_or_b32 v32, v33, -16, v32")
    a("v_cmp_ne_u32 vcc, 0, v32")
    a("s_and_b64 exec, exec, vcc"); a("s_cbranch_scc1 L_qpoll")
    a("s_mov_b64 exec, -1")
    a("v_lshlrev_b32 v1, 3, v0"); a(f"v_add_u32 v1, {L_QS:#x}, v1")
    for u in range(8): a(f"ds_write_b64 v1, {vr(66+4*u,2)} offset:{QP*u}")
    a("v_cmp_ne_u32 vcc, 0, v33")
    a("s_cmp_eq_u64 vcc, 0"); a(f"s_cselect_b32 {sSAME}, 2, 1"); a(f"v_mov_b32 v1, {sSAME}")
    a(f"ds_write_b32 v7, v1 offset:{F_QRDY}")
    for r in range(4): a(f"v_mov_b32 v{28+r}, -1")
    a("v_lshlrev_b32 v4, 8, v0")
    a(f"s_lshr_b32 {sT3}, {sWL}, 4"); a(f"s_lshl_b32 {sT3}, {sT3}, 14"); a(f"s_lshl4_add_u32 {sT3}, {sS}, {sT3}")
    a(f"s_add_u32 {sT3}, {sT3}, {WS_O:#x}")
    store_local(f"buffer_store_dwordx4 v[28:31], v4, {WS}, {sT3} offen")
    lab("L_qdone")
    lds_spin("v7", F_QRDY, sSAME)
    stamp(2)
    a("v_bfe_u32 v1, v0, 2, 1"); a("v_lshl_add_u32 v1, v11, 1, v1"); a(f"v_mul_u32_u24 v1, {QP}, v1")
    a("v_lshl_add_u32 v1, v12, 4, v1"); a(f"v_add_u32 v4, {L_QS:#x}, v1")
    for u in range(8): a(f"ds_read_b128 {vr(64+4*u,4)}, v4 offset:{64*u}")
    a(f"s_lshl_b32 s80, {sH}, 15")
    a("v_xor_b32 v1, v12, v13"); a("v_lshlrev_b32 v1, 4, v1"); a("v_lshl_add_u32 v1, v13, 9, v1"); a("v_add_u32 v16, s80, v1")
    for u in range(1, 4): a(f"v_xor_b32 v{16+u}, {64*u}, v16")
    lds_spin("v6", F_PROG, ge=8+window-1)
    stamp(3)
    seq = [(t, u) for u in range(8) for t in range(4)]
    def kread(k):
        t, u = seq[k]
        a(f"ds_read_b128 {vr(96+4*k,4)}, v{16+(u&3)} offset:{8192*t+256*(u>>2)}")
    for k in range(12): kread(k)
    for k in range(32):
        if k + 12 < 32: kread(k + 12)
        t, u = seq[k]
        a(f"s_waitcnt lgkmcnt({min(12, 31-k)})")
        mfma(20 + 4 * t, 64 + 4 * u, 96 + 4 * k, u == 0)
    a("s_mov_b32 vcc_lo, 0"); a("s_mov_b32 vcc_hi, -1")
    a("v_and_b32 v1, 1, v12"); a("v_lshlrev_b32 v8, 10, v1"); a("v_lshl_add_u32 v9, v1, 4, v6")
    a("v_lshlrev_b32 v1, 8, v1"); a("v_lshl_add_u32 v1, v11, 6, v1"); a("v_and_b32 v4, 12, v0"); a("v_add_u32 v1, v1, v4")
    a("v_lshrrev_b32 v4, 5, v0"); a("v_lshl_add_u32 v1, v4, 4, v1")
    a(f"s_lshl_b32 {sT0}, {sH}, 9"); a(f"s_add_u32 {sT0}, {sT0}, {L_PT:#x}"); a(f"v_add_u32 v4, {sT0}, v1")
    for j in range(4):
        a(f"v_cndmask_b32 v{20+j}, v{20+j}, v{24+j}, vcc"); a(f"v_cndmask_b32 v{28+j}, v{28+j}, v{32+j}, vcc")
    a("v_add_f32 v20, v20, v21"); a("v_add_f32 v22, v22, v23"); a("v_add_f32 v28, v28, v29"); a("v_add_f32 v30, v30, v31")
    a("v_add_f32 v20, v20, v22"); a("v_add_f32 v21, v28, v30")
    c = f2u(1.4426950408889634 / 16)
    a(f"v_mul_f32 v20, {c:#x}, v20"); a(f"v_mul_f32 v21, {c:#x}, v21")
    a("v_max_f32 v24, v20, v21")
    allreduce("v_max_f32", [24], [28], swaps=("v_permlane32_swap_b32",))
    a("v_sub_f32 v20, v20, v24"); a("v_sub_f32 v21, v21, v24")
    a("v_exp_f32 v20, v20"); a("v_exp_f32 v21, v21")
    a(f"ds_write_b32 v9, v24 offset:{F_M}")
    a("v_add_f32 v25, v20, v21")
    a("v_cvt_pk_bf16_f32 v20, v20, v20"); a("v_cvt_pk_bf16_f32 v21, v21, v21")
    a("ds_write_b32 v4, v20"); a("ds_write_b32 v4, v21 offset:32")
    a("s_waitcnt vmcnt(0)")
    a(f"ds_write_b32 v6, v5 offset:{F_PRDY}")
    allreduce("v_add_f32", [25], [28], swaps=("v_permlane32_swap_b32",))
    a("v_mov_b32 v22, v2"); a("v_mov_b32 v23, v3")
    a(f"s_lshr_b32 {sT0}, {sWL}, 4"); a(f"s_lshl_b32 {sT0}, {sT0}, 11"); a(f"s_lshl2_add_u32 {sT1}, {sS}, {sH}")
    a(f"s_lshl4_add_u32 {sT0}, {sT1}, {sT0}"); a(f"s_add_u32 {sT0}, {sT0}, {WS_ST:#x}")
    a("s_mov_b64 exec, 0x10001")
    store_local(f"buffer_store_dwordx4 v[22:25], v8, {WS}, {sT0} offen")
    a("s_mov_b64 exec, -1")
    stamp(4)
    srd(60, 24, 4096*448*2)
    def wo_prefetch():
        if wptrig > 40 or nowo: return
        if wptrig <= 32: lds_spin("v6", F_PROG, ge=8+wptrig)
        else:
            lds_spin("v7", F_DONE); gwait(kw)
        a(f"s_lshl2_add_u32 {sT0}, {sWL}, {sH}"); a(f"s_mul_i32 {sT0}, {sT0}, {28*128}")
        a("v_lshlrev_b32 v1, 7, v0"); a("s_mov_b64 exec, 0xfffffff")
        a(f"buffer_load_dword v220, v1, {WO}, {sT0} offen")
        a("s_mov_b64 exec, -1")
    a("s_mov_b32 m0, s80")
    a("v_lshrrev_b32 v8, 2, v0")
    a("v_lshlrev_b32 v1, 6, v10"); a("v_lshl_add_u32 v1, v11, 3, v1"); a("v_add_u32 v16, s80, v1")
    if touch:
        a(f"s_mul_i32 {sT0}, {sX}, {512*896}"); a(f"v_mul_u32_u24 v1, {512*896-128}, v0"); a("s_mov_b64 exec, 3")
        a(f"buffer_load_dword v219, v1, {WO}, {sT0} offen"); a("s_mov_b64 exec, -1")
    a(f"s_cmp_lt_u32 {sI}, {N_WO}"); a("s_cbranch_scc1 L_wo")
    srd(64, 28, 448*1792*2); srd(68, 30, 448*1792*2); srd(72, 32, 1792*448*2)
    if touch:
        a(f"v_mul_u32_u24 v1, {448*3584-128}, v0"); a("s_mov_b64 exec, 3")
        for k, m in enumerate((WG, WU, WD)): a(f"buffer_load_dword v{216+k}, v1, {m}, 0 offen")
        a("s_mov_b64 exec, -1")
    a(f"s_cmp_lt_u32 {sI}, {FIN0}"); a("s_cbranch_scc1 L_ffn")
    a("s_branch L_final")
    flush_far()

    page()
    lab("L_wo")
    lds_spin("v6", F_PROG, ge=8+strig)
    a(f"s_lshl_b32 {sT1}, {sI}, 6")
    a(f"s_or_b32 {sT0}, {sX}, {sH}"); a(f"s_cselect_b32 {sT1}, 0x10000, {sT1}")
    a("v_lshrrev_b32 v1, 5, v0"); a("v_mul_u32_u24 v1, 896, v1"); a("v_and_b32 v4, 31, v0"); a("v_lshl_add_u32 v1, v4, 1, v1")
    a(f"buffer_load_ushort v38, v1, {X}, {sT1} offen")
    a(f"s_lshr_b32 {sT1}, {sH}, 1"); a(f"s_lshl2_add_u32 {sT0}, {sX}, {sT1}"); a(f"s_lshl_b32 {sT0}, {sT0}, 10"); a(f"s_add_u32 {sT0}, {sT0}, {WS_ST:#x}")
    a(f"s_mov_b32 {sCNT}, 0")
    lab("L_stpoll")
    a(f"buffer_load_dwordx4 v[28:31], v15, {WS}, {sT0} offen sc1"); a(f"buffer_load_dwordx4 v[32:35], v15, {WS}, {sT0} offen offset:2048 sc1")
    bound()
    a("s_waitcnt vmcnt(0)")
    a("v_xor_b32 v28, v28, v2"); a("v_xor_b32 v29, v29, v3"); a("v_xor_b32 v32, v32, v2"); a("v_xor_b32 v33, v33, v3")
    a("v_or_b32 v28, v28, v29"); a("v_or3_b32 v28, v28, v32, v33")
    a("v_cmp_ne_u32 vcc, 0, v28")
    a("s_and_b64 exec, exec, vcc"); a("s_cbranch_scc1 L_stpoll")
    a("s_mov_b64 exec, -1")
    stamp(5)
    dpp("v_max_f32", 24, 30, "quad_perm:[1,0,3,2]"); dpp("v_max_f32", 25, 34, "quad_perm:[1,0,3,2]")
    dpp("v_max_f32", 24, 24, "quad_perm:[2,3,0,1]"); dpp("v_max_f32", 25, 25, "quad_perm:[2,3,0,1]")
    a("v_mov_b32 v26, v24"); a("v_mov_b32 v27, v25")
    allreduce("v_max_f32", [26, 27], [28, 29], rors=(8, 4))
    a("v_sub_f32 v30, v30, v26"); a("v_sub_f32 v34, v34, v27"); a("v_sub_f32 v24, v24, v26"); a("v_sub_f32 v25, v25, v27")
    a("v_exp_f32 v30, v30"); a("v_exp_f32 v34, v34"); a("v_exp_f32 v24, v24"); a("v_exp_f32 v25, v25")
    a("v_mul_f32 v31, v31, v30"); a("v_mul_f32 v35, v35, v34")
    allreduce("v_add_f32", [31, 35], [28, 29])
    a("v_rcp_f32 v31, v31"); a("v_rcp_f32 v35, v35")
    a("v_lshlrev_b32 v38, 16, v38")
    a("v_mul_f32 v24, v24, v31"); a("v_mul_f32 v25, v25, v35")
    for bb in range(2):
        for j in range(4): a(f"v_mov_b32_dpp v{40+4*bb+j}, v{24+bb} row_newbcast:{4*j} row_mask:0xf bank_mask:0xf")
    a(f"s_lshl_b32 {sT2}, {sH}, 8"); a(f"s_add_u32 {sT2}, {sT2}, {L_RED2:#x}"); a("v_lshlrev_b32 v9, 2, v0"); a(f"v_add_u32 v36, {sT2}, v9")
    a("v_lshlrev_b32 v37, 4, v13"); a(f"v_add_u32 v37, {L_RED2:#x}, v37")
    a("v_lshlrev_b32 v1, 3, v13"); a("v_lshl_add_u32 v9, v12, 14, v1")
    a("v_mul_u32_u24 v17, 896, v8"); a("v_lshl_add_u32 v17, v11, 4, v17")
    a(f"s_lshl2_add_u32 {sT2}, {sX}, {sH}"); a(f"s_mul_i32 {sT2}, {sT2}, {128*896}")
    a(f"s_lshl_b32 {sT1}, {sI}, 6"); a(f"s_add_u32 {sT2}, {sT2}, {sT1}")
    p_prod(sT3, sT1); a(f"s_xor_b32 s28, {sT3}, 0x2000")
    wo_prefetch()
    if wtrig <= 32: lds_spin("v7", F_PROG, ge=8+wtrig, four=24)
    else: lds_spin("v7", F_DONE)
    for k in range(8):
        dma("v17", WO, sT2)
        if k < 7: a(f"s_add_u32 {sT2}, {sT2}, {16*896}")
    a(f"s_lshl3_add_u32 {sT0}, {sX}, {sH}"); a(f"s_lshl_b32 {sT0}, {sT0}, 12"); a(f"s_add_u32 {sT0}, {sT0}, {WS_O:#x}")
    a(f"s_add_u32 {sT1}, {sT0}, 16384")
    def oloads(bs):
        for bb in bs:
            for u in range(4): a(f"buffer_load_dwordx4 {vr(96+16*bb+4*u,4)}, v15, {WS}, {(sT0, sT1)[bb]} offen offset:{1024*u} sc1")
    def oround(bs, mid=None):
        if osleep: a(f"s_sleep {osleep}")
        oloads(bs)
        bound()
        if mid: lab(mid)
        left = 4 * len(bs)
        for bb in bs:
            for u in range(4):
                left -= 1
                a(f"s_waitcnt vmcnt({left})")
                for t in range(2): mfma(20 + 8 * bb + 4 * t, 96 + 16 * bb + 4 * u, 64 + 8 * u + 4 * t, u == 0)
                maxchain(48 + bb, range(96 + 16 * bb + 4 * u, 100 + 16 * bb + 4 * u), acc=u > 0)
    if ofirst:
        lds_spin("v7", F_DONE, dst=sT2)
        stamp(7)
        oloads((0, 1))
    for u in range(4):
        a(f"s_waitcnt vmcnt({6-2*u+(8 if ofirst else 0)})")
        for t in range(2):
            a(f"ds_read_b64_tr_b16 {vr(64+8*u+4*t,2)}, v16 offset:{2048*u+32*t}")
            a(f"ds_read_b64_tr_b16 {vr(66+8*u+4*t,2)}, v16 offset:{2048*u+32*t+256}")
        if u == 2: a("s_waitcnt lgkmcnt(4)")
    stamp(6)
    a(f"s_mov_b32 {sCNT}, 0")
    if ofirst:
        a("s_waitcnt lgkmcnt(0)"); a("s_branch L_omid")
    else:
        lds_spin("v7", F_DONE, dst=sT2)
        stamp(7)
    lab("L_oboth")
    oround((0, 1), "L_omid")
    a("v_cmp_eq_u32 vcc, -1, v48"); a("v_cmp_eq_u32 s[26:27], -1, v49")
    a("s_cbranch_vccz L_o0ok")
    a("s_cmp_eq_u64 s[26:27], 0"); a("s_cbranch_scc0 L_oboth")
    def osingle(bb, name):
        if not opipe:
            lab(name); oround((bb,))
            a(f"v_cmp_eq_u32 vcc, -1, v{48+bb}"); a(f"s_cbranch_vccnz {name}")
            return
        oloads((bb,))
        lab(name)
        oloads((bb,)); bound()
        for k in range(opipe):
            a(f"s_waitcnt vmcnt({8 - 4*(k+1)//opipe})")
            maxchain(48 + bb, range(96 + 16 * bb, 112 + 16 * bb))
            a(f"v_cmp_eq_u32 vcc, -1, v{48+bb}")
            a(f"s_cbranch_vccz {name}ok" if k < opipe - 1 else f"s_cbranch_vccnz {name}")
        lab(name + "ok")
        for u in range(4):
            for t in range(2): mfma(20 + 8 * bb + 4 * t, 96 + 16 * bb + 4 * u, 64 + 8 * u + 4 * t, u == 0)
        a("s_nop 3")
    osingle(0, "L_oonly0")
    a("s_branch L_odone")
    lab("L_o0ok")
    a("s_cmp_eq_u64 s[26:27], 0"); a("s_cbranch_scc1 L_odone")
    osingle(1, "L_oonly1")
    lab("L_odone")
    a("s_nop 3")
    stamp(8)
    for bb in range(2):
        for t in range(2):
            d = 20 + 8 * bb + 4 * t
            a(f"v_pk_mul_f32 {vr(d,2)}, {vr(d,2)}, {vr(40+4*bb,2)}")
    for bb in range(2):
        for t in range(2):
            d = 20 + 8 * bb + 4 * t
            a(f"v_pk_fma_f32 {vr(d,2)}, {vr(d+2,2)}, {vr(42+4*bb,2)}, {vr(d,2)}")
    for d in (20, 24, 28, 32): a(f"v_add_f32 v{d}, v{d}, v{d+1}")
    a("v_permlane32_swap_b32 v20, v28"); a("v_permlane32_swap_b32 v24, v32")
    a("v_add_f32 v20, v20, v28"); a("v_add_f32 v24, v24, v32")
    a("v_permlane16_swap_b32 v20, v24"); a("v_add_f32 v20, v20, v38"); a("v_add_f32 v20, v20, v24")
    a("ds_write_b32 v36, v20")
    a("s_mov_b64 exec, 1")
    a(f"ds_add_rtn_u32 v1, v7, v5 offset:{F_CNT2}")
    a("s_mov_b64 exec, -1")
    for k in range(4): a(f"ds_read_b128 {vr(128+4*k,4)}, v37 offset:{256*k}")
    a("s_waitcnt lgkmcnt(4)")
    a(f"v_readfirstlane_b32 {sT0}, v1")
    a(f"s_cmp_eq_u32 {sT0}, 3"); a("s_cbranch_scc0 L_exitW")
    a("s_waitcnt lgkmcnt(2)")
    for j in (0, 2): a(f"v_pk_add_f32 {vr(128+j,2)}, {vr(128+j,2)}, {vr(132+j,2)}")
    a("s_waitcnt lgkmcnt(0)")
    for j in (0, 2): a(f"v_pk_add_f32 {vr(136+j,2)}, {vr(136+j,2)}, {vr(140+j,2)}")
    for j in (0, 2): a(f"v_pk_add_f32 {vr(128+j,2)}, {vr(128+j,2)}, {vr(136+j,2)}")
    a("v_cvt_pk_bf16_f32 v20, v128, v129"); a("v_cvt_pk_bf16_f32 v21, v130, v131")
    a("v_min_u32 v20, -2, v20"); a("v_min_u32 v21, -2, v21")
    a(f"buffer_store_dwordx2 v[20:21], v9, {WS}, {sT3} offen sc1")
    a(f"buffer_store_dwordx2 v[20:21], v9, {WS}, s28 offen sc1")
    if wb == 1:
        a(f"s_cmp_eq_u32 {sI}, 0"); a("s_cbranch_scc0 L_exitW"); a("buffer_wbl2 sc1")
    stamp(9)
    lab("L_exitW")
    a("s_branch L_exit" if stamps or pwg >= 0 else "s_endpgm")

    page()
    lab("L_ffn")
    a("v_and_b32 v1, 7, v0"); a("v_lshlrev_b32 v1, 5, v1"); a("v_bfe_u32 v4, v0, 3, 2"); a("v_lshl_add_u32 v1, v4, 2, v1")
    a(f"v_add_u32 v1, {sH}, v1"); a("v_lshlrev_b32 v4, 4, v1")
    tagpoll("v4")
    a("v_lshlrev_b32 v48, 6, v13"); a("v_lshl_add_u32 v48, v12, 4, v48")
    a(f"s_cmp_ge_u32 {sH}, 2"); a(f"s_cselect_b32 {sT0}, 0x10000000, 0"); a(f"v_add_u32 v49, {sT0}, v48")
    a("v_lshlrev_b32 v1, 3, v0"); a(f"v_add_u32 v51, {L_R3:#x}, v1"); a(f"s_lshl_b32 {sT0}, {sH}, 9"); a(f"v_add_u32 v50, {sT0}, v51")
    a(f"s_lshl_b32 {sT0}, {sH}, 7"); a(f"s_add_u32 {sT0}, {sT0}, {L_HH:#x}"); a("v_lshlrev_b32 v1, 1, v0"); a(f"v_add_u32 v54, {sT0}, v1")
    a("v_lshrrev_b32 v1, 3, v13"); a("v_lshlrev_b32 v1, 6, v1"); a("v_lshl_add_u32 v1, v12, 4, v1"); a(f"v_add_u32 v1, {sT0}, v1")
    a("v_and_b32 v4, 7, v0"); a(f"v_mov_b32 v55, {L_FL + F_ZERO:#x}")
    for t in range(8):
        a(f"v_cmp_eq_u32 vcc, {t}, v4"); a(f"v_cndmask_b32 v{56+t}, v55, v1, vcc")
    for r in range(4): a(f"v_mov_b32 v{40+r}, 0x3f803f80")
    p_copy("s16", sT0); a(f"s_lshl_b32 {sT0}, {sH}, 10"); a(f"s_add_u32 s16, s16, {sT0}")
    for u in range(1, 4): a(f"s_add_u32 s{16+u}, s16, {4096*(u&1) + 65536*(u>>1)}")
    f_prod("s21", sT1); a(f"s_and_b32 {sT1}, {sH}, 1"); a(f"s_lshl_b32 {sT1}, {sT1}, 10"); a(f"s_add_u32 s21, s21, {sT1}")
    a(f"s_lshr_b32 {sT1}, {sH}, 1"); a(f"s_lshl_b32 {sT1}, {sT1}, 13"); a(f"s_xor_b32 s21, s21, {sT1}")
    a(f"s_add_u32 s22, s21, {F_ALT:#x}")
    a(f"s_cmp_eq_u32 {sH}, 3"); a("s_cselect_b32 s20, 0, -1")
    a("s_mov_b32 s24, 0xffff0000"); a("s_mov_b32 s25, 0xffff0000")
    a("v_mul_u32_u24 v9, 3584, v8"); a("v_lshl_add_u32 v9, v11, 4, v9")
    a("v_xor_b32 v1, v12, v13"); a("v_mul_u32_u24 v17, 896, v12"); a("v_lshl_add_u32 v17, v1, 4, v17")
    a(f"s_cmp_eq_u32 {sH}, 3"); a(f"s_cselect_b32 {sT0}, 8, 16"); a(f"v_cmp_gt_u32 vcc, {sT0}, v13")
    a("v_mov_b32 v1, 0x10000000"); a("v_cndmask_b32 v17, v1, v17, vcc")
    a("v_lshlrev_b32 v1, 8, v10"); a("v_lshl_add_u32 v1, v11, 6, v1"); a("v_bfe_u32 v4, v0, 2, 2"); a("v_lshl_add_u32 v1, v4, 4, v1")
    a("v_add_u32 v64, s80, v1")
    for q in range(1, 4): a(f"v_xor_b32 v{64+q}, {16*q}, v64")
    a(f"s_mul_i32 s28, {sH}, {32*3584}"); a(f"s_lshl_b32 {sT1}, {PHI}, 6"); a(f"s_add_u32 s28, s28, {sT1}")
    a(f"s_add_u32 s29, s28, {16*3584}")
    a(f"s_mul_i32 s30, {PHI}, {32*896}"); a(f"s_lshl_b32 {sT1}, {sH}, 8"); a(f"s_add_u32 s30, s30, {sT1}")
    a(f"s_sub_u32 {sT1}, {sI}, {FFN0}"); a(f"s_lshl3_add_u32 {sT1}, {sX}, {sT1}"); a(f"s_lshl2_add_u32 {sT1}, {sT1}, {sH}")
    a(f"s_lshl2_add_u32 s33, {sT1}, {WS_HN:#x}")
    a(f"s_mov_b32 {sT2}, 0")
    wo_prefetch()
    gu = ((WG, "s28"), (WG, "s29"), (WU, "s28"), (WU, "s29"))
    issued = [0]
    def pull(upto):
        while issued[0] < min(upto, 24):
            k = issued[0]; issued[0] += 1
            if k < 16:
                dma("v9", *gu[k & 3])
                if k & 3 == 3 and k < 15: a(f"s_add_u32 s28, s28, {128*3584}"); a(f"s_add_u32 s29, s29, {128*3584}")
            else:
                dma("v17", WD, "s30")
                if k < 23: a(f"s_add_u32 s30, s30, {4*896}")
    if early:
        lds_spin("v7", F_PROG, ge=40+vtrig, four=24)
        pull(early)
    lds_spin("v7", F_DONE)
    gwait(kp)
    stamp(5)
    pf_ = pfirst
    def ploads():
        for u in range(4): a(f"buffer_load_dwordx4 {vr(176+4*u,4)}, v{49 if u == 3 else 48}, {WS}, s{16+u} offen sc1")
    for u in range(5):
        if u < 4:
            pull(4 * (u + 1 + ahead) if u < 3 else 24)
            a(f"s_waitcnt vmcnt({issued[0] - 4*(u+1)})")
            if u == 0: stamp(8)
            if u == 3: stamp(9)
            if u == 3 and pf_: ploads()
        if u > 0:
            a("s_waitcnt lgkmcnt(0)")
        if u < 4:
            for t in range(4):
                a(f"ds_read_b64_tr_b16 {vr(80+16*u+4*t,2)}, v16 offset:{4096*u+2048*(t>>1)+32*(t&1)}")
                a(f"ds_read_b64_tr_b16 {vr(82+16*u+4*t,2)}, v16 offset:{4096*u+2048*(t>>1)+32*(t&1)+256}")
        if u > 0:
            for t in range(4): mfma(20 + 4 * t, 40, 80 + 16 * (u - 1) + 4 * t, u == 1)
    a("v_cndmask_b32 v46, v20, v24, s[24:25]"); a("v_cndmask_b32 v47, v28, v32, s[24:25]")
    a("ds_write_b64 v50, v[46:47] offset:2048")
    a("s_waitcnt lgkmcnt(0)")
    a("s_barrier")
    a("ds_read2st64_b64 v[20:23], v51 offset0:4 offset1:5"); a("ds_read2st64_b64 v[24:27], v51 offset0:6 offset1:7")
    a(f"s_waitcnt vmcnt({4 if pf_ else 0}) lgkmcnt(0)")
    stamp(6)
    for t in range(8):
        a(f"ds_read_b64_tr_b16 {vr(144+4*t,2)}, v{64+(t>>1)} offset:{16384+8*(t&1)}")
        a(f"ds_read_b64_tr_b16 {vr(146+4*t,2)}, v{64+(t>>1)} offset:{16384+8*(t&1)+1024}")
        if t == 5: a("s_waitcnt lgkmcnt(4)")
    a("v_pk_add_f32 v[20:21], v[20:21], v[22:23]"); a("v_pk_add_f32 v[24:25], v[24:25], v[26:27]"); a("v_pk_add_f32 v[46:47], v[20:21], v[24:25]")
    a(f"v_mul_f32 v46, {f2u(-1/448):#x}, v46"); a(f"v_mul_f32 v47, {f2u(-1/448):#x}, v47")
    stamp(7)
    a(f"s_mov_b32 {sCNT}, 0")
    if pf_: a("s_branch L_pmid")
    lab("L_ppoll")
    ploads()
    bound()
    lab("L_pmid")
    for u in range(4):
        a(f"s_waitcnt vmcnt({3-u})")
        mfma(196, 176 + 4 * u, 40, u == 0)
        maxchain(1, range(176 + 4 * u, 180 + 4 * u), acc=u > 0)
        if u < spec - 1:
            for t in range(4): mfma(20 + 4 * t, 176 + 4 * u, 80 + 16 * u + 4 * t, u == 0)
    u0 = max(spec - 1, 0)
    if spec:
        for t in range(2): mfma(20 + 4 * t, 176 + 4 * u0, 80 + 16 * u0 + 4 * t, u0 == 0)
    a("v_cmp_eq_u32 vcc, -1, v1")
    a("s_and_b64 exec, exec, vcc"); a("s_cbranch_scc1 L_ppoll")
    a("s_mov_b64 exec, -1")
    stamp(10)
    rest = [(u, t) for u in range(u0, 4) for t in range(4)][2 if spec else 0:]
    fill = ["v_pk_add_f32 v[196:197], v[196:197], v[198:199]", None, "v_permlane32_swap_b32 v196, v197", "v_add_f32 v196, v196, v197",
            "v_mov_b32 v197, v196", None, "v_permlane16_swap_b32 v196, v197", "v_add_f32 v196, v196, v197", "v_mul_f32 v44, v196, v46", "v_mul_f32 v45, v196, v47"]
    start = max(len(rest) - 8, 0)
    for k, (u, t) in enumerate(rest):
        mfma(20 + 4 * t, 176 + 4 * u, 80 + 16 * u + 4 * t, u == 0)
        if k >= start and fill:
            f = fill.pop(0)
            if f: a(f)
    for f in fill:
        if f: a(f)
    for t in range(4): a(f"v_pk_add_f32 {vr(20+4*t,2)}, {vr(20+4*t,2)}, {vr(22+4*t,2)}")
    for t in range(4): a(f"v_permlane32_swap_b32 v{20+4*t}, v{21+4*t}")
    for t in range(4): a(f"v_add_f32 v{20+4*t}, v{20+4*t}, v{21+4*t}")
    a("v_permlane16_swap_b32 v20, v24"); a("v_permlane16_swap_b32 v28, v32")
    a("v_add_f32 v44, v44, v20"); a("v_add_f32 v45, v45, v28")
    a("v_add_f32 v44, v44, v24"); a("v_add_f32 v45, v45, v32")
    a("ds_write_b64 v50, v[44:45]")
    a("s_waitcnt lgkmcnt(0)")
    a("s_barrier")
    a("ds_read2st64_b64 v[20:23], v51 offset0:0 offset1:1"); a("ds_read2st64_b64 v[24:27], v51 offset0:2 offset1:3")
    a("s_waitcnt lgkmcnt(1)")
    a("v_pk_add_f32 v[20:21], v[20:21], v[22:23]")
    a("s_waitcnt lgkmcnt(0)")
    a("v_pk_add_f32 v[24:25], v[24:25], v[26:27]"); a("v_pk_add_f32 v[20:21], v[20:21], v[24:25]")
    a("v_mul_f32 v20, v20, v21")
    a("v_cvt_pk_bf16_f32 v20, v20, v20")
    a("ds_write_b16 v54, v20")
    for t in range(8): a(f"ds_read_b128 {vr(96+4*t,4)}, v{56+t}")
    if hint and hpos == 2:
        a("s_mov_b64 exec, 1"); store_local(f"buffer_store_dword v2, v14, {WS}, s33 offen"); a("s_mov_b64 exec, -1")
    for t in range(8):
        a(f"s_waitcnt lgkmcnt({7-t})")
        mfma(24, 144 + 4 * t, 96 + 4 * t, t == 0)
    a("s_mov_b32 exec_hi, s20")
    for j in range(4): a(f"v_min_u32 v{24+j}, -2, v{24+j}")
    a(f"buffer_store_dwordx4 v[24:27], v15, {WS}, s{22 if f2 else 21} offen sc1")
    if f2: a(f"buffer_store_dwordx4 v[24:27], v15, {WS}, s21 offen sc1")
    if hint and hpos == 1:
        a("s_mov_b64 exec, 1"); store_local(f"buffer_store_dword v2, v14, {WS}, s33 offen")
    stamp(11)
    a("s_branch L_exit" if stamps or pwg >= 0 else "s_endpgm")
    flush_far()

    page()
    lab("L_final")
    a(f"s_lshl2_add_u32 {sT0}, {sX}, {sI}"); a(f"s_sub_u32 s80, {sT0}, {FIN0}")
    srd(76, 34, 2*448*2)
    for r in (9, 10, 11, 17): a(f"v_mov_b32 v{r}, 0")
    a("s_mov_b32 s30, 0")
    a(f"s_cmp_lt_u32 {sI}, {REF0}"); a("s_cbranch_scc0 L_fin1")
    a(f"s_cmp_lt_u32 {sX}, 7"); a("s_cbranch_scc0 L_fin1")
    a(f"s_cmp_lt_u32 {sH}, 2"); a("s_cbranch_scc0 L_fin1")
    a("s_mov_b32 s30, 1")
    a(f"s_and_b32 s16, s80, 15"); a("s_lshl_b32 s16, s16, 7"); a(f"s_lshr_b32 {sT0}, s80, 4"); a(f"s_xor_b32 {sT0}, {sT0}, {fpol}")
    a(f"s_lshl_b32 {sT0}, {sT0}, 13"); a(f"s_add_u32 s16, s16, {sT0}"); a(f"s_add_u32 s16, s16, {WS_F:#x}")
    a(f"s_and_b32 {sT1}, s80, 1"); a(f"s_lshr_b32 {sT2}, s80, 1")
    a("v_lshrrev_b32 v8, 3, v0"); a("v_and_b32 v9, 7, v0")
    a(f"v_add_u32 v1, {FFN0}, v8"); a(f"v_mov_b32 v4, {sT2}"); a("v_cmp_eq_u32 vcc, 7, v8"); a("v_cndmask_b32 v1, v1, v4, vcc")
    a("v_lshl_add_u32 v1, v9, 5, v1"); a("v_lshlrev_b32 v4, 4, v1")
    a("v_lshlrev_b32 v10, 3, v9"); a("v_lshl_add_u32 v11, v8, 7, v10"); a("v_lshl_add_u32 v10, v12, 1, v10")
    a("v_lshlrev_b32 v9, 4, v9"); a("v_and_b32 v1, 3, v8"); a("v_lshl_add_u32 v9, v1, 11, v9"); a("v_lshrrev_b32 v1, 2, v8"); a("v_lshl_add_u32 v9, v1, 14, v9")
    a(f"s_mul_i32 s23, {sT1}, 896"); a(f"s_lshl_b32 {sT3}, {sT2}, 6"); a(f"s_add_u32 s23, s23, {sT3}")
    if otouch: a(f"buffer_load_ushort v16, v10, {OUT}, s23 offen")
    p_copy("s26", sT3); a(f"s_lshl_b32 {sT3}, {sT1}, 6"); a(f"s_add_u32 s26, s26, {sT3}")
    a(f"s_and_b32 s24, {sT2}, 7"); a("s_lshl_b32 s24, s24, 10"); a(f"s_lshr_b32 {sT3}, {sT2}, 3"); a(f"s_lshl_b32 {sT3}, {sT3}, 16")
    a(f"s_add_u32 s24, s24, {sT3}"); a("s_add_u32 s24, s24, s26")
    for u in range(1, 7): a(f"s_add_u32 s{16+u}, s16, {32768*u}")
    for u in range(1, 4): a(f"s_add_u32 s{26+u}, s26, {4096*(u&1) + 65536*(u>>1)}")
    a("v_lshlrev_b32 v17, 7, v13"); a("v_lshl_add_u32 v17, v12, 4, v17")
    a(f"s_cmp_eq_u32 {sH}, 0"); a("s_cbranch_scc1 L_tagF")
    a("v_and_b32 v1, 7, v0"); a("v_lshlrev_b32 v1, 5, v1"); a("v_lshrrev_b32 v4, 3, v0"); a("v_add_u32 v1, v1, v4"); a("v_lshlrev_b32 v4, 4, v1")
    tagpoll("v4")
    a("v_add_u32 v4, 128, v4")
    lab("L_tagF")
    tagpoll("v4")
    lab("L_fin1")
    a(f"s_sub_u32 {sT1}, {sI}, {FIN0}"); a(f"s_lshl2_add_u32 {sT1}, {sT1}, {sH}")
    a(f"s_mul_i32 {sT2}, {sT1}, {30 if nodup else 41}")
    if nodup: a(f"s_add_u32 {sT2}, {sT2}, 512")
    a(f"v_add_u32 v1, {sT2}, v0"); a("v_min_u32 v1, 1791, v1")
    a("v_lshrrev_b32 v4, 2, v1"); a("v_mul_u32_u24 v4, 3584, v4"); a("v_and_b32 v1, 3, v1"); a("v_lshl_add_u32 v4, v1, 7, v4")
    if nodup >= 2:
        a(f"s_mul_i32 {sT2}, {sT1}, 12"); a(f"v_add_u32 v1, {sT2}, v0"); a("v_lshrrev_b32 v19, 2, v1"); a("v_mul_u32_u24 v19, 3584, v19")
        a("v_and_b32 v1, 3, v1"); a("v_lshl_add_u32 v19, v1, 7, v19")
    a(f"s_mul_i32 {sT2}, {sT1}, 36"); a(f"v_add_u32 v1, {sT2}, v0"); a("v_min_u32 v1, 1567, v1"); a("v_lshlrev_b32 v18, 7, v1")
    a(f"s_mul_i32 {sT2}, {sX}, 448"); a(f"s_and_b32 {sT2}, {sT2}, -128"); a(f"s_mul_i32 {sT3}, {sX}, {224*896}")
    wo_prefetch()
    if ftrig <= 32: lds_spin("v7", F_PROG, ge=8+ftrig+vtrig, four=24)
    else:
        lds_spin("v7", F_DONE); gwait(kf)
    a("s_mov_b32 exec_hi, 0x1ff")
    if nodup: a("s_mov_b64 exec, 0x3fffffff")
    if not nofw: a(f"buffer_load_dword v216, v4, {WG}, {sT2} offen"); a(f"buffer_load_dword v217, v4, {WU}, {sT2} offen")
    def rows0():
        a("s_mov_b64 exec, 0xfff")
        a(f"buffer_load_dword v214, v19, {WG}, {sT2} offen"); a(f"buffer_load_dword v215, v19, {WU}, {sT2} offen")
    if nodup == 2: rows0()
    a("s_mov_b64 exec, -1")
    if ftrig <= 32: lds_spin("v7", F_DONE)
    gwait(kd)
    a("s_mov_b32 exec_hi, 0xf")
    if not nofw: a(f"buffer_load_dword v218, v18, {WD}, {sT3} offen")
    if nodup == 3: rows0()
    a("s_mov_b64 exec, -1")
    a("s_cmp_eq_u32 s30, 1"); a("s_cbranch_scc0 L_exit")
    a(f"s_cmp_eq_u32 {sH}, 0"); a("s_cbranch_scc1 L_fin2")
    for r in range(4): a(f"v_mov_b32 v{60+r}, 0x3f803f80")
    lds_spin("v7", F_DONE, ge=2)
    poll([f"buffer_load_dwordx4 {vr(64+4*u,4)}, v17, {WS}, s{26+(u>>1)} offen offset:{2048*(u&1)}" for u in range(7)], range(64, 92))
    for u in range(7):
        mfma(92, 64 + 4 * u, 64 + 4 * u, u == 0); mfma(96, 64 + 4 * u, 60, u == 0)
    a("s_mov_b32 vcc_lo, 0x00ff00ff"); a("s_mov_b32 vcc_hi, 0xff00ff00")
    a("v_pk_add_f32 v[92:93], v[92:93], v[94:95]"); a("v_pk_add_f32 v[96:97], v[96:97], v[98:99]")
    a("v_add_f32 v92, v92, v93"); a("v_add_f32 v96, v96, v97")
    a("v_cndmask_b32 v92, 0, v92, vcc")
    for sh in (8, 4, 2, 1): dpp("v_add_f32", 92, 92, f"row_ror:{sh}")
    allreduce("v_add_f32", [92, 96], [93, 97], rors=())
    a(f"v_mul_f32 v96, {f2u(1/448):#x}, v96"); a(f"v_mul_f32 v92, {f2u(1/448):#x}, v92")
    a("v_fma_f32 v92, -v96, v96, v92"); a("v_max_f32 v92, 0, v92")
    a(f"v_add_f32 v92, {f2u(1e-5):#x}, v92"); a("v_rcp_f32 v57, v92")
    a(f"ds_write_b32 v7, v57 offset:{F_CNT2}"); a("v_mov_b32 v1, 3"); a(f"ds_write_b32 v7, v1 offset:{F_DONE}")
    stamp(11)
    a("s_branch L_exit")
    lab("L_fin2")
    stamp(7)
    poll([f"buffer_load_dwordx2 v[24:25], v11, {WS}, s24 offen"], [24, 25], sleep=rsl)
    if wb == 2:
        a(f"s_cmp_eq_u32 {sI}, {FIN0}"); a("s_cbranch_scc0 L_nowb"); a("buffer_wbl2 sc1"); lab("L_nowb")
    a("v_mov_b32 v1, 2"); a(f"ds_write_b32 v7, v1 offset:{F_DONE}")
    a("s_cmp_eq_u32 s80, 0"); a("s_cbranch_scc0 L_noep")
    a("s_mov_b64 exec, 1"); a(f"buffer_store_dwordx2 v[2:3], v14, {WS}, 0 offen sc1"); a("s_mov_b64 exec, -1")
    lab("L_noep")
    a("v_lshlrev_b32 v56, 16, v24"); a("v_and_b32 v57, 0xffff0000, v24"); a("v_lshlrev_b32 v58, 16, v25"); a("v_and_b32 v59, 0xffff0000, v25")
    stamp(10)
    def lanesum(r):
        a(f"v_permlane32_swap_b32 v{r}, v{r+2}"); a(f"v_permlane32_swap_b32 v{r+1}, v{r+3}")
        a(f"v_add_f32 v{r}, v{r}, v{r+2}"); a(f"v_add_f32 v{r+1}, v{r+1}, v{r+3}")
        a(f"v_permlane16_swap_b32 v{r}, v{r+1}"); a(f"v_add_f32 v{r}, v{r}, v{r+1}")
        dpp("v_add_f32", r, r, "row_ror:8")
    lanesum(56)
    if hint:
        a(f"s_lshl_b32 {sT0}, {sX}, 7"); a(f"s_add_u32 {sT0}, {sT0}, {WS_HN:#x}"); a("v_lshlrev_b32 v4, 2, v0")
        a("s_mov_b64 exec, 0xfffffff"); a(f"s_mov_b32 {sCNT}, 0")
        lab("L_hpoll")
        a(f"buffer_load_dword v1, v4, {WS}, {sT0} offen sc1")
        bound()
        a("s_waitcnt vmcnt(0)")
        if hcnt == 28:
            a("v_cmp_ne_u32 vcc, v1, v2"); a("s_cbranch_vccnz L_hpoll")
        else:
            a("v_cmp_eq_u32 vcc, v1, v2"); a(f"s_bcnt1_i32_b32 {sT1}, vcc_lo"); a(f"s_cmp_lt_u32 {sT1}, {hcnt}"); a("s_cbranch_scc1 L_hpoll")
        a("s_mov_b64 exec, -1")
    if fdelay: a(f"s_sleep {fdelay}")
    if f2:
        for u in range(7): a(f"buffer_load_dwordx4 {vr(64+4*u,4)}, v8, {WS}, s{16+u} offen sc1")
        lds_spin("v7", F_DONE, ge=3)
        a(f"ds_read_b32 v57, v7 offset:{F_CNT2}")
        if f2 > 1: a(f"s_sleep {f2-1}")
        for u in range(7): a(f"buffer_load_dwordx4 {vr(24+4*u,4)}, v9, {WS}, s{16+u} offen sc1")
        a(f"s_mov_b32 {sCNT}, 0"); a("s_waitcnt lgkmcnt(0)")
        for u in range(1, 7):
            a(f"s_waitcnt vmcnt({13-u})")
            for j in (0, 2): a(f"v_pk_add_f32 {vr(20+j,2)}, {vr((64 if u == 1 else 20)+j,2)}, {vr(64+4*u+j,2)}")
        a("v_pk_add_f32 v[52:53], v[20:21], v[22:23]")
        a("v_cmp_u_f32 vcc, v52, v53")
        a("s_cbranch_vccz L_fok"); a("s_branch L_fmid")
    else:
        for u in range(7): a(f"buffer_load_dwordx4 {vr(24+4*u,4)}, v9, {WS}, s{16+u} offen sc1")
        lds_spin("v7", F_DONE, ge=3)
        a(f"ds_read_b32 v57, v7 offset:{F_CNT2}")
        a(f"s_mov_b32 {sCNT}, 0"); a("s_waitcnt lgkmcnt(0)"); a("s_branch L_fmid")
    lab("L_fpoll")
    for u in range(7): a(f"buffer_load_dwordx4 {vr(24+4*u,4)}, v9, {WS}, s{16+u} offen sc1")
    bound()
    lab("L_fmid")
    for u in range(1, 7):
        a(f"s_waitcnt vmcnt({6-u})")
        for j in (0, 2): a(f"v_pk_add_f32 {vr(20+j,2)}, {vr((24 if u == 1 else 20)+j,2)}, {vr(24+4*u+j,2)}")
    a("v_pk_add_f32 v[52:53], v[20:21], v[22:23]")
    a("v_cmp_u_f32 vcc, v52, v53")
    a("s_cbranch_vccnz L_fslow")
    lab("L_fok")
    a("s_mov_b64 exec, -1")
    stamp(12)
    lanesum(20)
    a("v_fma_f32 v20, v20, v57, v56")
    a("s_mov_b32 exec_lo, 0x00ff00ff"); a("s_mov_b32 exec_hi, 0x00ff00ff")
    a("v_cvt_pk_bf16_f32 v20, v20, v20")
    a(f"buffer_store_short v20, v10, {OUT}, s23 offen" + (" sc1" if outsc & 1 else "") + (" sc0" if outsc & 2 else "") + (" nt" if outsc & 4 else ""))
    a("s_branch L_exit" if stamps or pwg >= 0 else "s_endpgm")
    lab("L_fslow")
    maxchain(1, range(24, 52))
    a("v_cmp_eq_u32 vcc, -1, v1")
    a("s_and_b64 exec, exec, vcc"); a("s_cbranch_scc1 L_fpoll")
    a("s_branch L_fok")
    lab("L_exit")
    if stamps:
        a("s_mov_b64 exec, -1")
        a("s_waitcnt vmcnt(0) lgkmcnt(0)")
        a("s_memrealtime s[100:101]"); a("s_waitcnt lgkmcnt(0)"); a("s_mov_b32 s98, s100"); a("s_mov_b32 s99, s82")
        a(f"s_cmp_lt_u32 {sWAVE}, 4"); a("s_cbranch_scc0 L_dump")
        a(f"s_sub_u32 {sT0}, {sI}, {FFN0}"); a(f"s_cmp_lt_u32 {sT0}, 7"); a("s_cbranch_scc0 L_dump")
        a("s_barrier"); a("s_barrier")
        lab("L_dump")
        a("s_sleep 32"); a("s_memrealtime s[100:101]"); a("s_waitcnt lgkmcnt(0)"); a("s_sub_u32 s100, s100, s82")
        a("s_cmp_lt_u32 s100, 2500"); a("s_cbranch_scc1 L_dump")
        for k in range(16): a(f"v_mov_b32 v{20+k}, s{84+k}")
        a(f"s_lshl_b32 {sT0}, s2, 3"); a(f"s_add_u32 {sT0}, {sT0}, {sWAVE}"); a(f"s_lshl_b32 {sT0}, {sT0}, 6"); a(f"s_add_u32 {sT0}, {sT0}, {WS_STAMP:#x}")
        a("v_mov_b32 v1, 0"); a("s_mov_b64 exec, 1")
        for k in range(4): a(f"buffer_store_dwordx4 {vr(20+4*k,4)}, v1, {WS}, {sT0} offen offset:{16*k} sc1")
    if pa >= 0:
        a("s_cmp_eq_u32 s2, 255"); a("s_cbranch_scc0 L_end")
        a(f"s_cmp_eq_u32 {sWAVE}, 7"); a("s_cbranch_scc0 L_end")
        lab("L_pr0")
        a("s_memrealtime s[98:99]"); a("s_waitcnt lgkmcnt(0)"); a("s_sub_u32 s98, s98, s82")
        a("s_cmp_lt_u32 s98, 3500"); a("s_cbranch_scc1 L_pr0")
        a(f"s_mov_b32 s10, {WS_STAMP + 4*pa:#x}"); a(f"s_mov_b32 s11, {WS_STAMP + 4*pb:#x}")
        a(f"buffer_load_dword v20, v1, {WS}, s10 offen sc1"); a(f"buffer_load_dword v21, v1, {WS}, s11 offen sc1")
        a("s_waitcnt vmcnt(0)"); a("v_sub_u32 v20, v20, v21"); a("v_readfirstlane_b32 s10, v20")
        a("s_add_u32 s10, s10, 200"); a("s_and_b32 s10, s10, 0xfff"); a("s_lshl_b32 s10, s10, 3"); a("s_add_u32 s10, s10, 4000")
        lab("L_pr1")
        a("s_memrealtime s[98:99]"); a("s_waitcnt lgkmcnt(0)"); a("s_sub_u32 s98, s98, s82")
        a("s_cmp_lt_u32 s98, s10"); a("s_cbranch_scc1 L_pr1")
    if pwg >= 0:
        a(f"s_cmp_eq_u32 s2, {pwg}"); a("s_cbranch_scc0 L_end")
        a(f"s_cmp_eq_u32 {sWAVE}, {pwave}"); a("s_cbranch_scc0 L_end")
        if padto == 1:
            a("s_getreg_b32 s10, hwreg(HW_REG_XCC_ID, 0, 4)"); a("s_mul_i32 s10, s10, 1000"); a("s_add_u32 s10, s10, 2000")
        elif padto: a(f"s_mov_b32 s10, {padto}")
        else:
            a("s_waitcnt vmcnt(0)"); a("s_memrealtime s[98:99]"); a("s_waitcnt lgkmcnt(0)")
            a(f"s_sub_u32 s10, s98, s82"); a("s_and_b32 s10, s10, 0xfff"); a("s_lshl_b32 s10, s10, 3")
        lab("L_prl")
        a("s_memrealtime s[98:99]"); a("s_waitcnt lgkmcnt(0)"); a("s_sub_u32 s98, s98, s82")
        a("s_cmp_lt_u32 s98, s10"); a("s_cbranch_scc1 L_prl")
    lab("L_end")
    a("s_endpgm")
    body = pad(L)
    body += ['.section .rodata,"a"', ".p2align 6", f".amdhsa_kernel {NAME}_kernel",
             "  .amdhsa_next_free_vgpr 224", "  .amdhsa_next_free_sgpr 102", "  .amdhsa_accum_offset 224",
             "  .amdhsa_group_segment_fixed_size 0", "  .amdhsa_kernarg_size 96", "  .amdhsa_user_sgpr_count 2",
             "  .amdhsa_user_sgpr_kernarg_segment_ptr 1", "  .amdhsa_system_sgpr_workgroup_id_x 1",
             "  .amdhsa_float_denorm_mode_32 3", ".end_amdhsa_kernel"]
    return "\n".join(body) + "\n"

if __name__ == "__main__":
    kw = {}
    for arg in sys.argv[2:]:
        k, v = arg.split("="); kw[k] = int(v)
    open(sys.argv[1], "w").write(gen(**kw))
```
